```python
import torch

def _softmax(x, axis=-1):
    return torch.softmax(x, dim=axis)
def _gelu(x):
    return torch.nn.functional.gelu(x, approximate="tanh")
def _silu(x):
    return torch.nn.functional.silu(x)
def _sigmoid(x):
    return torch.sigmoid(x)
def _layernorm(x, axis=-1, eps=1e-5):
    m = x.mean(dim=axis, keepdim=True)
    v = x.var(dim=axis, keepdim=True, unbiased=False)
    return (x - m) / torch.sqrt(v + eps)
def _scatter_add(tgt, idx, src, axis=0):
    return tgt.clone().index_add_(axis, idx, src)
def _segment_sum(src, seg, n):
    out = torch.zeros((n,) + src.shape[1:], dtype=src.dtype)
    return out.index_add_(0, seg, src)
def _pad(x, pw):
    flat = tuple(v for pair in reversed(pw) for v in pair)
    return torch.nn.functional.pad(x, flat)

kernel_name = 'parallel_sum__gqa_block_cached__geglu_ffn__decode'

def setup_inputs():

    _w = (lambda a: (lambda t: t.to(torch.bfloat16) if t.is_floating_point() else t)(torch.as_tensor(a)))
    def _A_setup():
        B, Sq, D = 2, 1, 576
        Hq, Hkv, Sk, Dh = 32, 16, 32768, 128
        assert Hq % Hkv == 0, (Hq, Hkv)
        return {
            "x": _w((lambda *s: torch.randn(*s, dtype=torch.bfloat16) * 0.05)(B, Sq, D)),
            "k_cache": _w((lambda *s: torch.randn(*s, dtype=torch.bfloat16) * 3.2)(B, Hkv, Sk, Dh)),
            "v_cache": _w((lambda *s: torch.randn(*s, dtype=torch.bfloat16) * 1.6)(B, Hkv, Sk, Dh)),
            "wq": _w((lambda *s: torch.randn(*s, dtype=torch.bfloat16) * 3.2)(D, Hq * Dh) * (D ** -0.5)),
            "wo": _w((lambda *s: torch.randn(*s, dtype=torch.bfloat16) * 1.6)(Hq * Dh, D) * ((Hq * Dh) ** -0.5)),
        }
    _A_in = _A_setup()

    def _B_setup():
        B, S, D, F = 2, 1, 576, 4608
        return {
            "x": _w((lambda *s: torch.randn(*s, dtype=torch.bfloat16) * 0.05)(B, S, D)),
            "w_gate": _w((lambda *s: torch.randn(*s, dtype=torch.bfloat16) * 0.05)(D, F)),
            "w_up": _w((lambda *s: torch.randn(*s, dtype=torch.bfloat16) * 0.05)(D, F)),
            "w_down": _w((lambda *s: torch.randn(*s, dtype=torch.bfloat16) * 0.05)(F, D)),
        }
    _B_in = _B_setup()

    return {
        "A_x": _A_in["x"],
        "A_k_cache": _A_in["k_cache"],
        "A_v_cache": _A_in["v_cache"],
        "A_wq": _A_in["wq"],
        "A_wo": _A_in["wo"],
        "B_x": _B_in["x"],
        "B_w_gate": _B_in["w_gate"],
        "B_w_up": _B_in["w_up"],
        "B_w_down": _B_in["w_down"],
    }

def reference(A_x, A_k_cache, A_v_cache, A_wq, A_wo, B_x, B_w_gate, B_w_up, B_w_down):
    def _A_ref(x, k_cache, v_cache, wq, wo):
        B, Sq, D = x.shape
        Hq, Dh = 32, 128
        Hkv = k_cache.shape[1]
        rep = Hq // Hkv
        q = (lambda x, *d: x.permute(*d))((x @ wq).reshape(B, Sq, Hq, Dh), 0, 2, 1, 3)
        k = (lambda x, n, axis: torch.repeat_interleave(x, n, dim=axis))(k_cache, rep, axis=1)
        v = (lambda x, n, axis: torch.repeat_interleave(x, n, dim=axis))(v_cache, rep, axis=1)
        scores = torch.einsum("bhqd,bhkd->bhqk", q, k) * (Dh ** -0.5)
        p = _softmax(scores, axis=-1)
        o = torch.einsum("bhqk,bhkd->bhqd", p, v)
        return (lambda x, *d: x.permute(*d))(o, 0, 2, 1, 3).reshape(B, Sq, Hq * Dh) @ wo

    def _B_ref(x, w_gate, w_up, w_down):
        return (_gelu(x @ w_gate) * (x @ w_up)) @ w_down

    x = A_x
    xn = _layernorm(x, axis=-1)
    return x + _A_ref(xn, A_k_cache, A_v_cache, A_wq, A_wo) + _B_ref(xn, B_w_gate, B_w_up, B_w_down)
```

```python
import re

TRANS = ("v_exp_f32", "v_log_f32", "v_rcp_f32", "v_rsq_f32", "v_sqrt_f32", "v_sin_f32", "v_cos_f32")
MFMA_PASSES = {"v_mfma_f32_16x16x32_bf16": 4, "v_mfma_f32_32x32x16_bf16": 8, "v_mfma_f32_16x16x16_bf16": 4}
D_TO_VALU = {2: 5, 4: 8, 8: 12, 16: 20}
D_TO_AB = {2: 5, 4: 8, 8: 12, 16: 20}
D_TO_C_OVL = {2: 4, 4: 6, 8: 10, 16: 18}
C_WAR = {2: 1, 4: 3, 8: 7, 16: 15}

_reg_re = re.compile(r"^(-?)(?:abs\()?([vsa])(\d+)\)?$")
_rng_re = re.compile(r"^(-?)([vsa])\[(\d+):(\d+)\]$")


def regs_of(op):
    op = op.strip()
    if op == "vcc":
        return {("s", 106), ("s", 107)}
    if op in ("vcc_lo",):
        return {("s", 106)}
    if op in ("vcc_hi",):
        return {("s", 107)}
    if op == "exec":
        return {("s", 126), ("s", 127)}
    if op == "exec_lo":
        return {("s", 126)}
    if op == "exec_hi":
        return {("s", 127)}
    if op == "m0":
        return {("s", 124)}
    m = _reg_re.match(op)
    if m:
        return {(m.group(2), int(m.group(3)))}
    m = _rng_re.match(op)
    if m:
        return {(m.group(2), i) for i in range(int(m.group(3)), int(m.group(4)) + 1)}
    return set()


def split_ops(rest):
    out, depth, cur = [], 0, ""
    for ch in rest:
        if ch == "[":
            depth += 1
        if ch == "]":
            depth -= 1
        if ch == "," and depth == 0:
            out.append(cur.strip())
            cur = ""
        else:
            cur += ch
    if cur.strip():
        out.append(cur.strip())
    return out


class Ins:
    def __init__(self, line):
        self.line = line
        s = line.split(";")[0].strip()
        self.label = s.endswith(":")
        self.directive = s.startswith(".") or s == ""
        self.op = ""
        self.kind = None
        self.wr, self.rd = set(), set()
        self.dpp_rd, self.perm_rd, self.lane_rd = set(), set(), set()
        self.a = self.b = self.c = set()
        self.store_data = set()
        self.sgpr_rd_vmem = set()
        self.states = 1
        if self.label or self.directive:
            self.states = 0
            return
        parts = s.split(None, 1)
        self.op = op = parts[0]
        rest = parts[1] if len(parts) > 1 else ""
        ops = split_ops(rest)
        mods = ""
        if ops:
            toks = ops[-1].split()
            ops[-1] = toks[0] if toks else ""
            mods = " ".join(toks[1:])
        self.mods = mods
        R = [regs_of(o) for o in ops]
        base = op.replace("_e32", "").replace("_e64", "").replace("_dpp", "").replace("_sdwa", "")
        self.base = base
        if op == "s_nop":
            self.kind = "nop"
            self.states = int(ops[0], 0) + 1
        elif op.startswith("v_mfma"):
            self.kind = "mfma"
            self.passes = MFMA_PASSES[base]
            self.wr = R[0]
            self.a, self.b, self.c = R[1], R[2], R[3]
            self.rd = R[1] | R[2] | R[3]
        elif op.startswith("v_"):
            self.kind = "valu"
            self.trans = base in TRANS
            if base.startswith("v_permlane") and "swap" in base:
                self.wr = R[0] | R[1]
                self.rd = R[0] | R[1]
                self.perm_rd = R[0] | R[1]
            else:
                self.wr = set(R[0])
                srcs = R[1:]
                if base in ("v_add_co_u32", "v_addc_co_u32", "v_sub_co_u32", "v_subb_co_u32"):
                    self.wr |= R[1]
                    srcs = R[2:]
                for r in srcs:
                    self.rd |= r
                if base in ("v_fmac_f32", "v_mac_f32", "v_dot2c_f32_bf16"):
                    self.rd |= R[0]
                if base == "v_cndmask_b32" and len(ops) == 3:
                    self.rd |= regs_of("vcc")
                if re.search(r"quad_perm|row_|wave_", mods) or op.endswith("_dpp"):
                    self.dpp_rd = set(R[1])
                    self.rd |= R[0]
                if base in ("v_readfirstlane_b32", "v_readlane_b32"):
                    self.lane_rd = set(R[1])
        elif op.startswith("buffer_") or op.startswith("global_"):
            self.kind = "vmem"
            if op.startswith("buffer_"):
                if "load" in op:
                    if " lds" in (" " + mods):
                        self.rd = R[0] | R[1] | (R[2] if len(R) > 2 else set())
                    else:
                        self.wr = R[0]
                        self.rd = R[1] | R[2] | R[3]
                elif "store" in op:
                    self.rd = R[0] | R[1] | R[2] | R[3]
                    if "x3" in op or "x4" in op:
                        self.store_data = R[0]
                else:
                    self.rd = R[0] | R[1] | R[2] | R[3]
                    if "sc0" in mods:
                        self.wr = R[0]
            else:
                raise NotImplementedError(op)
            self.sgpr_rd_vmem = {r for r in self.rd if r[0] == "s"}
        elif op.startswith("ds_"):
            self.kind = "ds"
            if "read" in op or "permute" in op or "swizzle" in op:
                self.wr = R[0]
                for r in R[1:]:
                    self.rd |= r
            else:
                for r in R:
                    self.rd |= r
        elif op.startswith("s_"):
            if op.startswith("s_cbranch") or op in ("s_branch", "s_endpgm", "s_setpc_b64"):
                self.kind = "branch"
            else:
                self.kind = "salu"
                if R and not op.startswith("s_cmp") and op not in ("s_waitcnt", "s_barrier", "s_sleep", "s_setprio"):
                    self.wr = R[0]
                    for r in R[1:]:
                        self.rd |= r
                else:
                    for r in R:
                        self.rd |= r
        else:
            raise ValueError("unknown instr: " + line)


def need(p, c):
    n = 0
    if p.kind == "valu":
        vw = {r for r in p.wr if r[0] in "va"}
        sw = {r for r in p.wr if r[0] == "s"}
        if c.kind == "mfma" and vw & c.rd:
            n = max(n, 2)
        if c.kind == "valu":
            if vw & c.dpp_rd:
                n = max(n, 2)
            if vw & c.perm_rd:
                n = max(n, 2)
            if vw & c.lane_rd:
                n = max(n, 1)
            if p.trans and not c.trans and (vw & (c.rd | c.wr)):
                n = max(n, 1)
            if p.trans and c.trans and (vw & c.rd):
                n = max(n, 1)
            if sw & c.rd:
                n = max(n, 4 if c.base in ("v_readlane_b32", "v_writelane_b32") else 2)
        if c.kind in ("vmem", "ds") and p.trans and (vw & c.rd):
            n = max(n, 1)
        if c.kind == "vmem" and sw & c.sgpr_rd_vmem:
            n = max(n, 5)
        if c.kind == "salu" and sw & c.rd:
            n = max(n, 1)
    if p.kind == "mfma":
        ps = p.passes
        if c.kind == "valu" and p.wr & (c.rd | c.wr):
            n = max(n, D_TO_VALU[ps])
        if c.kind in ("vmem", "ds") and p.wr & (c.rd | c.wr):
            n = max(n, D_TO_VALU[ps])
        if c.kind == "mfma":
            if p.wr & (c.a | c.b):
                n = max(n, D_TO_AB[ps])
            if p.wr & c.c:
                if p.wr == c.c and ps == c.passes:
                    n = max(n, 2 if ps == 2 else 0)
                else:
                    n = max(n, D_TO_C_OVL[ps])
            elif p.wr & c.wr:
                n = max(n, D_TO_C_OVL[ps])
        if c.kind == "valu" and p.c & c.wr:
            n = max(n, C_WAR[ps])
    if p.kind == "vmem" and p.store_data:
        if c.kind == "valu" and p.store_data & c.wr:
            n = max(n, 2)
        elif p.store_data & c.wr:
            n = max(n, 1)
    if p.kind == "salu" and ("s", 124) in p.wr:
        if c.kind == "vmem" and " lds" in (" " + getattr(c, "mods", "")):
            n = max(n, 1)
    return n


def max_pending(p):
    if p.kind == "valu":
        sw = any(r[0] == "s" for r in p.wr)
        return 5 if sw else 2
    if p.kind == "mfma":
        return D_TO_VALU[p.passes]
    if p.kind == "vmem" and p.store_data:
        return 2
    if p.kind == "salu" and ("s", 124) in p.wr:
        return 1
    return 0


def run(lines):
    out = []
    hist = []
    pos = 0
    nops = 0
    for line in lines:
        for sub in line.split("\n"):
            ins = Ins(sub)
            if ins.directive:
                out.append(sub)
                continue
            if ins.label or ins.kind == "branch":
                req = 0
                for p, ppos in hist:
                    req = max(req, max_pending(p) - (pos - ppos))
                if ins.kind == "branch":
                    req -= 1
                while req > 0:
                    k = min(req, 16)
                    out.append(f"s_nop {k-1}")
                    pos += k
                    req -= k
                    nops += 1
                out.append(sub)
                if ins.kind == "branch":
                    pos += 1
                hist = []
                continue
            req = 0
            for p, ppos in hist:
                req = max(req, need(p, ins) - (pos - ppos))
            while req > 0:
                k = min(req, 16)
                out.append(f"s_nop {k-1}")
                pos += k
                req -= k
                nops += 1
            out.append(sub)
            pos += ins.states
            hist.append((ins, pos))
            hist = [(p, q) for p, q in hist if pos - q < 24]
    return out, nops
```

```python
import struct
import sys
import hazard

KNAME = "parallel_sum__gqa_block_cached__geglu_ffn__decode_kernel"

GU_OFF = 0x00000
AP_OFF = 0x24000
APH_OFF = 0x64000
OP_OFF = 0x65000
CNT_OFF = 0x8B400
CLR_AGENTS = 32
CLR_KIB = 18
assert CNT_OFF + 8192 <= CLR_AGENTS * CLR_KIB * 1024
QP_OFF = 0x90000
EPOCH_OFF = 0xD0000
TS_OFF = 0xE0000
WS_SIZE = 0x100000

L_ACTX = 0
L_QL = 2560
L_ACTT = 3072
L_WP = 4096
L_WH = 8192
L_CNT = 8256
L_GO = 8260
LDS_BYTES = 8448

SENT = 0xFFFFFFFF


def f32(x):
    return "0x%08x" % struct.unpack("<I", struct.pack("<f", x))[0]


LOG2E = 1.4426950408889634
SCALE = 128 ** -0.5


class Gen:
    def __init__(self, NS=26, CH=8, stamps=False, timeout=200000, dyn=True, sleep=2, hs_sleep=4, stash=True, pace=8):
        self.stash, self.pace = stash, pace
        self.hs_sleep = hs_sleep
        self.L = []
        self.NS, self.CH, self.stamps, self.timeout, self.dyn, self.sleep = NS, CH, stamps, timeout, dyn, sleep
        self.uid = 0

    def A(self, s):
        self.L.append(s)

    def label(self, base):
        self.uid += 1
        return f"L_{base}_{self.uid}"

    def srd(self, d, lo, size):
        A = self.A
        A(f"s_mov_b32 s{d}, s{lo}")
        A(f"s_and_b32 s{d+1}, s{lo+1}, 0xffff")
        A(f"s_mov_b32 s{d+2}, {size}")
        A(f"s_mov_b32 s{d+3}, 0x20000")

    def stamp(self, idx, srd, vtmp, sbase):
        if not self.stamps:
            return
        A = self.A
        A("s_memrealtime s[96:97]")
        A("s_waitcnt lgkmcnt(0)")
        A(f"v_mov_b32 v{vtmp}, s96")
        A(f"v_mov_b32 v{vtmp+1}, 0")
        A("s_mov_b64 s[98:99], exec")
        A("s_mov_b64 exec, 1")
        A(f"buffer_store_dword v{vtmp}, v{vtmp+1}, s[{srd}:{srd+3}], s{sbase} offen offset:{idx*4}")
        A("s_mov_b64 exec, s[98:99]")

    def allreduce_rows(self, op, v, t):
        A = self.A
        A(f"v_mov_b32 v{t}, v{v}")
        A(f"v_permlane16_swap_b32 v{t}, v{v}")
        A(f"{op} v{v}, v{v}, v{t}")
        A(f"v_mov_b32 v{t}, v{v}")
        A(f"v_permlane32_swap_b32 v{t}, v{v}")
        A(f"{op} v{v}, v{v}, v{t}")

    def allreduce_wave_add(self, v, t):
        A = self.A
        dm = "row_mask:0xf bank_mask:0xf"
        A(f"v_add_f32_dpp v{v}, v{v}, v{v} quad_perm:[1,0,3,2] {dm}")
        A(f"v_add_f32_dpp v{v}, v{v}, v{v} quad_perm:[2,3,0,1] {dm}")
        A(f"v_add_f32_dpp v{v}, v{v}, v{v} row_half_mirror {dm}")
        A(f"v_add_f32_dpp v{v}, v{v}, v{v} row_mirror {dm}")
        self.allreduce_rows("v_add_f32", v, t)

    def bf16r(self, d, s):
        self.A(f"v_cvt_pk_bf16_f32 v{d}, v{s}, v{s}")
        self.A(f"v_lshlrev_b32 v{d}, 16, v{d}")

    def sanitize(self, regs, vq):
        for r in regs:
            self.A(f"v_cmp_ne_u32 vcc, -1, v{r}")
            self.A(f"v_cndmask_b32 v{r}, v{vq}, v{r}, vcc")

    def any_sentinel(self, regs, t):
        A = self.A
        regs = list(regs)
        if len(regs) == 1:
            A(f"v_cmp_eq_u32 vcc, -1, v{regs[0]}")
            return
        if len(regs) == 2:
            A(f"v_max_u32 v{t}, v{regs[0]}, v{regs[1]}")
            rest = []
        else:
            A(f"v_max3_u32 v{t}, v{regs[0]}, v{regs[1]}, v{regs[2]}")
            rest = regs[3:]
        while rest:
            if len(rest) >= 2:
                A(f"v_max3_u32 v{t}, v{t}, v{rest[0]}, v{rest[1]}")
                rest = rest[2:]
            else:
                A(f"v_max_u32 v{t}, v{t}, v{rest[0]}")
                rest = rest[1:]
        A(f"v_cmp_eq_u32 vcc, -1, v{t}")

    def poll(self, issue, check_regs, t, stmo, sleep=None):
        A = self.A
        top, done = self.label("poll"), self.label("polld")
        A(f"s_mov_b32 s{stmo}, {self.timeout}")
        A(f"{top}:")
        issue()
        A("s_waitcnt vmcnt(0)")
        self.any_sentinel(check_regs, t)
        A(f"s_cbranch_vccz {done}")
        A(f"s_sleep {self.sleep if sleep is None else sleep}")
        A(f"s_sub_u32 s{stmo}, s{stmo}, 1")
        A(f"s_cmp_lg_u32 s{stmo}, 0")
        A(f"s_cbranch_scc1 {top}")
        A(f"{done}:")

    def header(self):
        A = self.A
        A(f"; @launch grid=(256,1,1) block=(384,1,1) lds={LDS_BYTES}")
        A('.amdgcn_target "amdgcn-amd-amdhsa--gfx950"')
        A(".text")
        A(f".globl {KNAME}")
        A(".p2align 8")
        A(f".type {KNAME},@function")
        A(f"{KNAME}:")
        A("s_cmp_ge_u32 s2, 256")
        A("s_cbranch_scc1 L_end")
        A("s_load_dwordx16 s[16:31], s[0:1], 0")
        A("s_load_dwordx8 s[32:39], s[0:1], 64")
        A("v_lshrrev_b32 v1, 6, v0")
        A("v_readfirstlane_b32 s3, v1")
        A("v_and_b32 v0, 63, v0")
        A("s_waitcnt lgkmcnt(0)")
        self.srd(40, 38, WS_SIZE)
        if self.stamps:
            A("s_lshl_b32 s95, s2, 3")
            A("s_add_u32 s95, s95, s3")
            A("s_lshl_b32 s95, s95, 6")
            A(f"s_add_u32 s95, s95, {TS_OFF}")
        A("s_cmp_eq_u32 s3, 4")
        A("s_cbranch_scc1 L_auxq")
        A("s_cmp_eq_u32 s3, 5")
        A("s_cbranch_scc1 L_auxf")

    def stream(self):
        A = self.A
        CH, NS = self.CH, self.NS
        NCH = (8 << 20) // (CH * 1024)
        PERWG = NCH // 8
        CB = CH * 1024
        nblk = (CH + 3) // 4
        vKo = [2 + i for i in range(nblk)]
        vVo = [2 + nblk + i for i in range(nblk)]
        r = 2 + 2 * nblk
        vZ, vCl = r, r + 1
        r += 2
        vM, vL, vNML, vMx, vT0, vT1, vT2 = r, r + 1, r + 2, r + 3, r + 4, r + 5, r + 6
        r += 7
        r = (r + 3) // 4 * 4
        vQ = r; r += 4
        vMask = r; r += 4
        vO = r; r += 4
        vA = [r, r + 4]; r += 8
        vS = r; r += CH
        r = (r + 3) // 4 * 4
        vD = r; r += 4 * CH
        vK = r; r += 4 * CH
        vV = r; r += 4 * CH
        vSK = r; vSV = r + 4 * CH
        if self.stash:
            r += 8 * CH
        self.stream_vgprs = r
        sK, sV = 44, 48
        sGb, sCnt, sCur, sNxt, sStep, sOff = 52, 53, 54, 55, 56, 57
        sT0, sT1, sT2 = 58, 59, 60
        sLog2e, sScale = 61, 62
        sHm = 64
        self.srd(sK, 18, 256 << 20)
        self.srd(sV, 20, 256 << 20)
        self.stamp(0, 40, vT0, 95)
        A(f"s_lshr_b32 s{sT0}, s2, 3")
        A(f"s_lshl_b32 s{sGb}, s{sT0}, 23")
        A(f"s_lshl_b32 s{sCnt}, s{sT0}, 8")
        A(f"s_add_u32 s{sCnt}, s{sCnt}, {CNT_OFF}")
        A(f"s_and_b32 s{sT0}, s2, 7")
        A(f"s_lshl_b32 s{sT0}, s{sT0}, 2")
        A(f"s_add_u32 s{sCur}, s{sT0}, s3")
        A(f"s_add_u32 s{sNxt}, s{sCur}, 32")
        A(f"s_mov_b32 s{sStep}, 0")
        A(f"v_bfe_u32 v{vT0}, v0, 2, 2")
        A(f"v_lshlrev_b32 v{vT0}, 8, v{vT0}")
        A(f"v_lshrrev_b32 v{vT1}, 4, v0")
        A(f"v_lshl_add_u32 v{vT0}, v{vT1}, 6, v{vT0}")
        A(f"v_and_b32 v{vT1}, 3, v0")
        A(f"v_lshl_add_u32 v{vT0}, v{vT1}, 4, v{vT0}")
        A(f"v_lshlrev_b32 v{vT1}, 4, v0")
        for i in range(nblk):
            A(f"v_add_u32 v{vKo[i]}, {4096*i}, v{vT0}")
            A(f"v_add_u32 v{vVo[i]}, {4096*i}, v{vT1}")

        def addr(sid):
            A(f"s_lshr_b32 s{sT0}, s{sid}, 5")
            A(f"s_and_b32 s{sT1}, s{sid}, 31")
            A(f"s_lshr_b32 s{sT2}, s{sT1}, 2")
            A(f"s_and_b32 s{sT1}, s{sT1}, 3")
            A(f"s_mul_i32 s{sT2}, s{sT2}, {PERWG}")
            A(f"s_lshl_b32 s{sT0}, s{sT0}, 2")
            A(f"s_add_u32 s{sT2}, s{sT2}, s{sT0}")
            A(f"s_add_u32 s{sT2}, s{sT2}, s{sT1}")
            A(f"s_mul_i32 s{sOff}, s{sT2}, {CB}")
            A(f"s_add_u32 s{sOff}, s{sOff}, s{sGb}")

        def ldK(i, base=None):
            base = vK if base is None else base
            A(f"buffer_load_dwordx4 v[{base+4*i}:{base+4*i+3}], v{vKo[i//4]}, s[{sK}:{sK+3}], s{sOff} offen offset:{(i%4)*1024} nt")

        def ldV(i, base=None):
            base = vV if base is None else base
            A(f"buffer_load_dwordx4 v[{base+4*i}:{base+4*i+3}], v{vVo[i//4]}, s[{sV}:{sV+3}], s{sOff} offen offset:{(i%4)*1024} nt")

        addr(sCur)
        A("s_barrier")
        seq = []
        if self.stash:
            seq += [("K", i, vSK) for i in range(CH)] + [("V", i, vSV) for i in range(CH)] + [("next",)]
        seq += [("K", i, vK) for i in range(CH)] + [("V", i, vV) for i in range(CH)]
        n_issued = 0
        consts_done = False

        def consts():
            A(f"s_mov_b32 s{sLog2e}, {f32(LOG2E)}")
            A(f"s_mov_b32 s{sScale}, {f32(SCALE)}")
            A(f"s_mov_b32 s{sHm}, 0x00ff00ff")
            A(f"s_mov_b32 s{sHm+1}, 0xff00ff00")
            A(f"v_mov_b32 v{vZ}, 0")
            for i in range(4):
                A(f"v_mov_b32 v{vO+i}, 0")
            A(f"v_mov_b32 v{vM}, 0xff7fffff")
            A(f"v_mov_b32 v{vL}, 0")
            A(f"v_mov_b32 v{vNML}, 0")
            A(f"v_and_b32 v{vT0}, 1, v0")
            A(f"v_cmp_eq_u32 vcc, 1, v{vT0}")
            A(f"v_mov_b32 v{vT1}, 0xffff0000")
            A(f"v_mov_b32 v{vT2}, 0xffff")
            A(f"v_cndmask_b32 v{vT1}, v{vT2}, v{vT1}, vcc")
            A(f"v_bfe_u32 v{vT0}, v0, 1, 2")
            for i in range(4):
                A(f"v_cmp_eq_u32 vcc, {i}, v{vT0}")
                A(f"v_cndmask_b32 v{vMask+i}, v{vZ}, v{vT1}, vcc")
            A(f"v_bfe_u32 v{vT0}, v0, 3, 1")
            A(f"v_lshlrev_b32 v{vT0}, 8, v{vT0}")
            A(f"v_lshrrev_b32 v{vT1}, 4, v0")
            A(f"v_lshl_add_u32 v{vT0}, v{vT1}, 6, v{vT0}")
            A(f"v_and_b32 v{vT1}, 3, v0")
            A(f"v_lshl_add_u32 v{vT0}, v{vT1}, 4, v{vT0}")
        for op in seq:
            if op[0] == "next":
                A(f"s_mov_b32 s{sCur}, s{sNxt}")
                A(f"s_add_u32 s{sNxt}, s{sNxt}, 32")
                A(f"s_mov_b32 s{sStep}, 1")
                addr(sCur)
                continue
            if n_issued >= self.pace:
                if not consts_done:
                    consts()
                    consts_done = True
                A(f"s_waitcnt vmcnt({self.pace-1})")
            (ldK if op[0] == "K" else ldV)(op[1], op[2])
            n_issued += 1
        if not consts_done:
            consts()
        A("s_barrier")
        A(f"ds_read_b128 v[{vQ}:{vQ+3}], v{vT0} offset:{L_QL}")
        self.stamp(1, 40, vT1, 95)
        A("s_waitcnt lgkmcnt(0)")
        W = 2 * CH - 1
        dm = "row_mask:0xf bank_mask:0xf"

        def body(kb, vb, refill, wK, wV):
            nores = self.label("norescale")
            for i in range(CH):
                A(f"s_waitcnt vmcnt({wK(i)})")
                A(f"v_mfma_f32_16x16x32_bf16 v[{vD+4*i}:{vD+4*i+3}], v[{kb+4*i}:{kb+4*i+3}], v[{vQ}:{vQ+3}], 0")
                if refill:
                    ldK(i, kb)
            for i in range(0, CH, 2):
                for k in (i, i + 1):
                    d = vD + 4 * k
                    A(f"v_mov_b32_dpp v{vS+k}, v{d} quad_perm:[0,0,0,0] {dm}")
                    A(f"v_add_f32_dpp v{vS+k}, v{d+1}, v{vS+k} quad_perm:[1,1,1,1] {dm}")
                    A(f"v_add_f32_dpp v{vS+k}, v{d+2}, v{vS+k} quad_perm:[2,2,2,2] {dm}")
                    A(f"v_add_f32_dpp v{vS+k}, v{d+3}, v{vS+k} quad_perm:[3,3,3,3] {dm}")
                a, b = vS + i, vS + i + 1
                A(f"v_cvt_pk_bf16_f32 v{vT0}, v{a}, v{b}")
                A(f"v_lshlrev_b32 v{a}, 16, v{vT0}")
                A(f"v_and_b32 v{b}, 0xffff0000, v{vT0}")
                A(f"v_mul_f32 v{a}, s{sScale}, v{a}")
                A(f"v_mul_f32 v{b}, s{sScale}, v{b}")
                A(f"v_cvt_pk_bf16_f32 v{vT0}, v{a}, v{b}")
                A(f"v_lshlrev_b32 v{a}, 16, v{vT0}")
                A(f"v_and_b32 v{b}, 0xffff0000, v{vT0}")
            A(f"v_max3_f32 v{vMx}, v{vS}, v{vS+1}, v{vS+2}")
            k = 3
            while k < CH:
                if k + 1 < CH:
                    A(f"v_max3_f32 v{vMx}, v{vMx}, v{vS+k}, v{vS+k+1}")
                    k += 2
                else:
                    A(f"v_max_f32 v{vMx}, v{vMx}, v{vS+k}")
                    k += 1
            A(f"v_cmp_gt_f32 vcc, v{vMx}, v{vM}")
            A(f"s_cbranch_vccz {nores}")
            self.allreduce_rows("v_max_f32", vMx, vT0)
            A(f"v_max_f32 v{vMx}, v{vMx}, v{vM}")
            A(f"v_sub_f32 v{vT0}, v{vM}, v{vMx}")
            A(f"v_mul_f32 v{vT0}, s{sLog2e}, v{vT0}")
            A(f"v_exp_f32 v{vT0}, v{vT0}")
            A(f"v_mov_b32 v{vM}, v{vMx}")
            A(f"v_mul_f32 v{vNML}, s{sLog2e}, v{vMx}")
            A(f"v_sub_f32 v{vNML}, 0, v{vNML}")
            A(f"v_mul_f32 v{vL}, v{vL}, v{vT0}")
            A(f"v_mov_b32_dpp v{vT1}, v{vT0} row_ror:8 {dm}")
            A(f"v_cndmask_b32 v{vT1}, v{vT1}, v{vT0}, s[{sHm}:{sHm+1}]")
            for i in range(4):
                A(f"v_mul_f32 v{vO+i}, v{vO+i}, v{vT1}")
            A(f"{nores}:")
            for i in range(CH):
                A(f"v_fma_f32 v{vS+i}, v{vS+i}, s{sLog2e}, v{vNML}")
            for i in range(CH):
                A(f"v_exp_f32 v{vS+i}, v{vS+i}")
            for i in range(CH):
                A(f"v_add_f32 v{vL}, v{vL}, v{vS+i}")
                A(f"v_cvt_pk_bf16_f32 v{vS+i}, v{vS+i}, v{vS+i}")

            def buildA(i):
                for rr in range(4):
                    A(f"v_and_b32 v{vA[i%2]+rr}, v{vMask+rr}, v{vS+i}")
            buildA(0)
            for i in range(CH):
                if i + 1 < CH:
                    buildA(i + 1)
                A(f"s_waitcnt vmcnt({wV(i)})")
                a = vA[i % 2]
                A(f"v_mfma_f32_16x16x32_bf16 v[{vO}:{vO+3}], v[{a}:{a+3}], v[{vb+4*i}:{vb+4*i+3}], v[{vO}:{vO+3}]")
                if refill:
                    ldV(i, vb)

        if self.stash:
            body(vSK, vSV, False, lambda i: 4 * CH - 1 - i, lambda i: 3 * CH - 1 - i)
        A("L_loop:")
        if self.dyn:
            A(f"s_cmp_lt_u32 s{sStep}, {NS-2}")
            A("s_cbranch_scc1 L_noclaim")
            A(f"s_mov_b32 s{sT0}, {self.timeout*8}")
            A("L_gowait:")
            A(f"ds_read_b32 v{vCl}, v{vZ} offset:{L_GO}")
            A("s_waitcnt lgkmcnt(0)")
            A(f"v_cmp_ne_u32 vcc, 1, v{vCl}")
            A("s_cbranch_vccz L_goseen")
            A("s_sleep 8")
            A(f"s_sub_u32 s{sT0}, s{sT0}, 1")
            A(f"s_cmp_lg_u32 s{sT0}, 0")
            A("s_cbranch_scc1 L_gowait")
            A("L_goseen:")
            A("s_mov_b64 exec, 1")
            A(f"v_mov_b32 v{vCl}, 1")
            A(f"buffer_atomic_add v{vCl}, v{vZ}, s[40:43], s{sCnt} offen sc0")
            A("s_mov_b64 exec, -1")
            A("L_noclaim:")
        addr(sNxt)
        A(f"s_cmp_lt_u32 s{sNxt}, {NCH}")
        A(f"s_cselect_b32 s{sOff}, s{sOff}, 0x80000000")
        body(vK, vV, True, lambda i: W, lambda i: W)
        A(f"s_mov_b32 s{sCur}, s{sNxt}")
        A(f"s_add_u32 s{sNxt}, s{sNxt}, 32")
        if self.dyn:
            A(f"s_cmp_lt_u32 s{sStep}, {NS-2}")
            A("s_cbranch_scc1 L_static")
            A(f"v_readfirstlane_b32 s{sNxt}, v{vCl}")
            A(f"s_add_u32 s{sNxt}, s{sNxt}, {NS*32+1}")
            A("L_static:")
        A(f"s_add_u32 s{sStep}, s{sStep}, 1")
        A(f"s_cmp_lt_u32 s{sCur}, {NCH}")
        A("s_cbranch_scc1 L_loop")
        self.stamp(2, 40, vT1, 95)
        self.allreduce_rows("v_add_f32", vL, vT0)
        A(f"s_lshl_b32 s{sT0}, s3, 10")
        A(f"v_lshlrev_b32 v{vT0}, 4, v0")
        A(f"v_add_u32 v{vT0}, s{sT0}, v{vT0}")
        A(f"ds_write_b128 v{vT0}, v[{vO}:{vO+3}] offset:{L_WP}")
        A(f"s_lshl_b32 s{sT0}, s3, 4")
        A(f"v_add_u32 v{vT0}, s{sT0}, v0")
        assert vL == vM + 1 and vM % 2 == 0, (vM, vL)
        A("s_mov_b64 exec, 0x101")
        A(f"ds_write_b64 v{vT0}, v[{vM}:{vL}] offset:{L_WH}")
        A("s_mov_b64 exec, 1")
        A(f"v_mov_b32 v{vT1}, 1")
        A("s_waitcnt lgkmcnt(0)")
        A(f"ds_add_u32 v{vZ}, v{vT1} offset:{L_CNT}")
        A("s_endpgm")

    def gemv(self, J, wreg, act_off, R, first=True):
        A = self.A
        vP, vAct, sE, sO, vAe, De, Do = R["P"], R["act"], R["selE"], R["selO"], R["Aset"], R["De"], R["Do"]
        for j in range(J):
            A(f"ds_read_b32 v{vP+j}, v{vAct} offset:{act_off+32*j}")

        def perms(j):
            s = vAe + 8 * (j % 2)
            for rr in range(4):
                A(f"v_perm_b32 v{s+rr}, v{vP+j}, v{vP+j}, v{sE+rr}")
            for rr in range(4):
                A(f"v_perm_b32 v{s+4+rr}, v{vP+j}, v{vP+j}, v{sO+rr}")
        A("s_waitcnt lgkmcnt(0)")
        perms(0)
        for j in range(J):
            if j + 1 < J:
                perms(j + 1)
            s = vAe + 8 * (j % 2)
            w = wreg(j)
            ce = "0" if (first and j == 0) else f"v[{De}:{De+3}]"
            co = "0" if (first and j == 0) else f"v[{Do}:{Do+3}]"
            A(f"v_mfma_f32_16x16x32_bf16 v[{De}:{De+3}], v[{s}:{s+3}], v[{w}:{w+3}], {ce}")
            A(f"v_mfma_f32_16x16x32_bf16 v[{Do}:{Do+3}], v[{s+4}:{s+7}], v[{w}:{w+3}], {co}")

    def gemv_publish(self, R, soff):
        A = self.A
        De, Do = R["De"], R["Do"]
        dm = "row_mask:0xf bank_mask:0xf"
        for rr in range(4):
            A(f"v_add_f32_dpp v{De+rr}, v{Do+rr}, v{De+rr} row_ror:8 {dm}")
        self.sanitize(range(De, De + 4), R["qnan"])
        A(f"s_mov_b64 exec, s[{R['m32']}:{R['m32']+1}]")
        A(f"buffer_store_dwordx4 v[{De}:{De+3}], v{R['outoff']}, s[40:43], s{soff} offen sc1")
        A("s_mov_b64 exec, -1")

    def tile_loads(self, J, wreg, vWoff, sW, sbase, step, stmp, j0=0, pol="nt"):
        A = self.A
        for j in range(J):
            A(f"s_add_u32 s{stmp}, s{sbase}, {(j0+j)*step}")
            w = wreg(j)
            A(f"buffer_load_dwordx4 v[{w}:{w+3}], v{vWoff}, s[{sW}:{sW+3}], s{stmp} offen {pol}")

    vRow8, vC16, vWoff, vAct, vOut, vL16, vQn, vZ = 1, 2, 3, 4, 5, 6, 7, 8
    vT = [9, 10, 11, 12, 13, 14, 15]
    selE, selO = 16, 20
    U = 24
    Aset, De, Do, P = 24, 40, 44, 48
    C = 120
    Wb = 128
    sW, sX, sDbg = 44, 48, 52
    sM32 = 56
    sT0, sT1, sT2, sT3, sTm, sB, sKvh = 58, 59, 60, 61, 62, 63, 64
    sSlotQ, sU, sSlotD, sSlotO, sBase = 65, 66, 67, 68, 69
    sLog2e = 70
    sNG, sHasD, sHasO = 71, 72, 73
    sRbD, sCbD, sKvO, sCbO, sGrp, sI = 74, 75, 76, 77, 78, 79
    sFin, sFinX = 80, 81

    def wreg(self, j):
        return self.Wb + 4 * j if j < 32 else 84 + 4 * (j - 32)

    def R(self):
        return dict(P=self.P, act=self.vAct, selE=self.selE, selO=self.selO, Aset=self.Aset, De=self.De, Do=self.Do,
                    qnan=self.vQn, m32=self.sM32, outoff=self.vOut)

    def aux_consts(self):
        A = self.A
        vT = self.vT
        A(f"v_lshrrev_b32 v{self.vRow8}, 3, v0")
        A(f"v_and_b32 v{self.vC16}, 7, v0")
        A(f"v_lshlrev_b32 v{self.vC16}, 4, v{self.vC16}")
        A(f"v_lshlrev_b32 v{self.vL16}, 4, v0")
        A(f"s_mov_b32 s{self.sM32}, 0x00ff00ff")
        A(f"s_mov_b32 s{self.sM32+1}, 0x00ff00ff")
        A(f"s_mov_b32 s{self.sLog2e}, {f32(LOG2E)}")
        A(f"v_mov_b32 v{self.vQn}, 0x7fc00000")
        A(f"v_mov_b32 v{self.vZ}, 0")
        A(f"v_lshrrev_b32 v{vT[0]}, 5, v0")
        A(f"v_lshlrev_b32 v{self.vOut}, 8, v{vT[0]}")
        A(f"v_lshl_add_u32 v{self.vOut}, v{self.vC16}, 1, v{self.vOut}")
        A(f"v_bfe_u32 v{vT[0]}, v0, 4, 1")
        A(f"v_lshl_add_u32 v{self.vOut}, v{vT[0]}, 4, v{self.vOut}")

    def aux_consts2(self):
        A = self.A
        vT = self.vT
        A(f"v_bfe_u32 v{vT[0]}, v0, 3, 1")
        A(f"v_lshlrev_b32 v{self.vAct}, 4, v{vT[0]}")
        A(f"v_lshrrev_b32 v{vT[0]}, 4, v0")
        A(f"v_lshl_add_u32 v{self.vAct}, v{vT[0]}, 2, v{self.vAct}")
        A(f"v_and_b32 v{vT[0]}, 1, v0")
        A(f"v_cmp_eq_u32 vcc, 1, v{vT[0]}")
        A(f"v_mov_b32 v{vT[1]}, 0x01000c0c")
        A(f"v_mov_b32 v{vT[2]}, 0x0c0c0100")
        A(f"v_cndmask_b32 v{vT[1]}, v{vT[2]}, v{vT[1]}, vcc")
        A(f"v_mov_b32 v{vT[3]}, 0x03020c0c")
        A(f"v_mov_b32 v{vT[2]}, 0x0c0c0302")
        A(f"v_cndmask_b32 v{vT[3]}, v{vT[2]}, v{vT[3]}, vcc")
        A(f"v_mov_b32 v{vT[2]}, 0x0c0c0c0c")
        A(f"v_bfe_u32 v{vT[0]}, v0, 1, 2")
        for i in range(4):
            A(f"v_cmp_eq_u32 vcc, {i}, v{vT[0]}")
            A(f"v_cndmask_b32 v{self.selE+i}, v{vT[2]}, v{vT[1]}, vcc")
            A(f"v_cndmask_b32 v{self.selO+i}, v{vT[2]}, v{vT[3]}, vcc")

    def div9(self, q, r, t):
        A = self.A
        A(f"s_mul_i32 s{q}, s{t}, 57")
        A(f"s_lshr_b32 s{q}, s{q}, 9")
        A(f"s_mul_i32 s{r}, s{q}, 9")
        A(f"s_sub_u32 s{r}, s{t}, s{r}")

    def wait_lds_done(self):
        self.wait_lds(L_CNT, 4)

    def wait_lds(self, off, val, sleep=1):
        A = self.A
        vT = self.vT
        top, done = self.label("ld"), self.label("ldd")
        A(f"s_mov_b32 s{self.sTm}, {self.timeout*8}")
        A(f"{top}:")
        A(f"ds_read_b32 v{vT[0]}, v{self.vZ} offset:{off}")
        A("s_waitcnt lgkmcnt(0)")
        A(f"v_cmp_ne_u32 vcc, {val}, v{vT[0]}")
        A(f"s_cbranch_vccz {done}")
        A(f"s_sleep {sleep}")
        A(f"s_sub_u32 s{self.sTm}, s{self.sTm}, 1")
        A(f"s_cmp_lg_u32 s{self.sTm}, 0")
        A(f"s_cbranch_scc1 {top}")
        A(f"{done}:")

    def auxq(self):
        A = self.A
        vT, U, C = self.vT, self.U, self.C
        vL16, vZ, vQn, vAct = self.vL16, self.vZ, self.vQn, self.vAct
        sW, sX, sDbg, sT0, sT1, sT2, sT3, sTm = self.sW, self.sX, self.sDbg, self.sT0, self.sT1, self.sT2, self.sT3, self.sTm
        sBase, sLog2e = self.sBase, self.sLog2e
        R = self.R()
        G = U
        self.aux_vgprs = 256
        A("L_auxq:")
        A("s_setprio 3")
        self.stamp(0, 40, vT[0], 95)
        sE = 82
        A(f"s_load_dwordx2 s[{sE}:{sE+1}], s[38:39], {EPOCH_OFF}")
        self.srd(sX, 16, 2304)
        self.srd(sW, 22, 576 * 4096 * 2)
        A(f"v_lshlrev_b32 v{vL16}, 4, v0")
        for k in (4, 5, 6, 7, 12, 13, 14, 15):
            A(f"v_mov_b32 v{G+k}, 0")
        A(f"buffer_load_dwordx4 v[{G}:{G+3}], v{vL16}, s[{sX}:{sX+3}], 0 offen")
        A(f"buffer_load_dwordx4 v[{G+8}:{G+11}], v{vL16}, s[{sX}:{sX+3}], 0 offen offset:1152")
        A("s_mov_b64 exec, 0xff")
        A(f"buffer_load_dwordx4 v[{G+4}:{G+7}], v{vL16}, s[{sX}:{sX+3}], 0 offen offset:1024")
        A(f"buffer_load_dwordx4 v[{G+12}:{G+15}], v{vL16}, s[{sX}:{sX+3}], 0 offen offset:2176")
        A("s_mov_b64 exec, -1")
        self.aux_consts()
        A(f"v_lshl_add_u32 v{self.vWoff}, v{self.vRow8}, 13, v{self.vC16}")
        A(f"s_and_b32 s{sT0}, s2, 3")
        A(f"s_lshr_b32 s{sT1}, s2, 2")
        A(f"s_mul_i32 s{sBase}, s{sT0}, {144*8192}")
        A(f"s_lshl_b32 s{sT1}, s{sT1}, 7")
        A(f"s_add_u32 s{sBase}, s{sBase}, s{sT1}")
        self.tile_loads(18, self.wreg, self.vWoff, sW, sBase, 8 * 8192, sT2)
        assert vT[1] % 2 == 0
        A(f"v_mov_b32 v{vT[1]}, 0")
        A(f"v_mov_b32 v{vT[2]}, 0")
        A("s_barrier")
        A(f"ds_write_b64 v{vZ}, v[{vT[1]}:{vT[2]}] offset:{L_CNT}")
        self.srd(sDbg, 36, 256)
        A(f"s_lshl_b32 s{self.sSlotQ}, s2, 10")
        A(f"s_add_u32 s{self.sSlotQ}, s{self.sSlotQ}, {QP_OFF}")
        self.aux_consts2()
        A("s_waitcnt vmcnt(18)")
        X = G + 16
        for b in range(2):
            for c in range(2):
                for k in range(4):
                    src = G + 8 * b + 4 * c + k
                    d = X + 16 * b + 8 * c + 2 * k
                    A(f"v_lshlrev_b32 v{d}, 16, v{src}")
                    A(f"v_and_b32 v{d+1}, 0xffff0000, v{src}")
        A(f"v_cmp_gt_u32 s[{sT0}:{sT1}], 8, v0")
        inv576 = f32(1.0 / 576.0)
        T = X + 32
        def regs(b):
            t = T + 8 * b
            return t, t + 1, t + 2, t + 3, t + 4, t + 5, t + 6
        for k in range(1, 16):
            for b in range(2):
                s = regs(b)[0]; x = X + 16 * b
                if k == 1:
                    A(f"v_add_f32 v{s}, v{x}, v{x+1}")
                else:
                    A(f"v_add_f32 v{s}, v{s}, v{x+k}")
        self.allreduce2(regs(0)[0], regs(0)[1], regs(1)[0], regs(1)[1])
        for b in range(2):
            s, t, mean, meanb, den, rcp, tmp = regs(b)
            A(f"v_mul_f32 v{mean}, {inv576}, v{s}")
            A(f"v_mov_b32 v{s}, 0")
        for k in range(16):
            for b in range(2):
                s, t, mean, meanb, den, rcp, tmp = regs(b); x = X + 16 * b
                A(f"v_sub_f32 v{tmp}, v{x+k}, v{mean}")
                if k >= 8:
                    A(f"v_cndmask_b32 v{tmp}, v{vZ}, v{tmp}, s[{sT0}:{sT1}]")
                A(f"v_fmac_f32 v{s}, v{tmp}, v{tmp}")
        self.allreduce2(regs(0)[0], regs(0)[1], regs(1)[0], regs(1)[1])
        for b in range(2):
            s, t, mean, meanb, den, rcp, tmp = regs(b)
            A(f"v_mul_f32 v{den}, {inv576}, v{s}")
            self.bf16r(den, den)
            A(f"v_add_f32 v{den}, {f32(1e-5)}, v{den}")
            self.bf16r(den, den)
            A(f"v_sqrt_f32 v{den}, v{den}")
            self.bf16r(meanb, mean)
            self.bf16r(den, den)
            A(f"v_rcp_f32 v{rcp}, v{den}")
        for k in range(0, 16, 2):
            for b in range(2):
                s, t, mean, meanb, den, rcp, tmp = regs(b); x = X + 16 * b
                a, c = x + k, x + k + 1
                A(f"v_sub_f32 v{a}, v{a}, v{meanb}")
                A(f"v_sub_f32 v{c}, v{c}, v{meanb}")
                A(f"v_cvt_pk_bf16_f32 v{tmp}, v{a}, v{c}")
                A(f"v_lshlrev_b32 v{a}, 16, v{tmp}")
                A(f"v_and_b32 v{c}, 0xffff0000, v{tmp}")
                for e in (a, c):
                    A(f"v_mul_f32 v{s}, v{e}, v{rcp}")
                    A(f"v_fma_f32 v{t}, -v{s}, v{den}, v{e}")
                    A(f"v_fma_f32 v{e}, v{t}, v{rcp}, v{s}")
                A(f"v_cvt_pk_bf16_f32 v{G+8*b+k//2}, v{a}, v{c}")
        A(f"v_lshlrev_b32 v{vT[0]}, 5, v0")
        A(f"ds_write_b128 v{vT[0]}, v[{G}:{G+3}] offset:{L_ACTX}")
        A(f"ds_write_b128 v{vT[0]}, v[{G+8}:{G+11}] offset:{L_ACTX+16}")
        A("s_mov_b64 exec, 0xff")
        A(f"ds_write_b128 v{vT[0]}, v[{G+4}:{G+7}] offset:{L_ACTX+2048}")
        A(f"ds_write_b128 v{vT[0]}, v[{G+12}:{G+15}] offset:{L_ACTX+2048+16}")
        A("s_mov_b64 exec, -1")
        A(f"s_and_b32 s{sT0}, s2, 3")
        A(f"s_mul_i32 s{sT0}, s{sT0}, {18*32}")
        A(f"v_add_u32 v{vT[6]}, s{sT0}, v{vAct}")
        A("s_waitcnt vmcnt(0) lgkmcnt(0)")
        A(f"s_add_u32 s{sE}, s{sE}, 1")
        A(f"s_add_u32 s{sE+1}, s{sE+1}, 0x9e3779b9")
        self.stamp(1, 40, vT[0], 95)
        self.gemv(18, self.wreg, L_ACTX, dict(R, act=vT[6]))
        De, Do = self.De, self.Do
        dm = "row_mask:0xf bank_mask:0xf"
        for rr in range(4):
            A(f"v_add_f32_dpp v{De+rr}, v{Do+rr}, v{De+rr} row_ror:8 {dm}")
        A(f"v_mov_b32 v{Do}, v{De+2}")
        A(f"v_mov_b32 v{Do+1}, v{De+3}")
        for d in (De, Do):
            A(f"v_mov_b32 v{d+2}, s{sE}")
            A(f"v_mov_b32 v{d+3}, s{sE+1}")
        A(f"v_lshlrev_b32 v{vT[0]}, 1, v{self.vOut}")
        A(f"s_mov_b64 exec, s[{self.sM32}:{self.sM32+1}]")
        A(f"buffer_store_dwordx4 v[{De}:{De+3}], v{vT[0]}, s[40:43], s{self.sSlotQ} offen sc1")
        A(f"buffer_store_dwordx4 v[{Do}:{Do+3}], v{vT[0]}, s[40:43], s{self.sSlotQ} offen offset:16 sc1")
        A("s_mov_b64 exec, -1")
        self.stamp(2, 40, vT[1], 95)
        A(f"s_lshr_b32 s{sT0}, s2, 3")
        A(f"s_lshr_b32 s{sT1}, s{sT0}, 4")
        A(f"s_and_b32 s{sT0}, s{sT0}, 15")
        A(f"s_lshl_b32 s{sT0}, s{sT0}, 14")
        A(f"s_lshl_b32 s{sT1}, s{sT1}, 9")
        A(f"s_add_u32 s{sT0}, s{sT0}, s{sT1}")
        A(f"s_add_u32 s{sT0}, s{sT0}, {QP_OFF}")
        A(f"v_lshrrev_b32 v{vT[0]}, 4, v0")
        A(f"v_lshlrev_b32 v{vT[0]}, 12, v{vT[0]}")
        A(f"v_and_b32 v{vT[1]}, 15, v0")
        A(f"v_lshl_add_u32 v{vT[5]}, v{vT[1]}, 5, v{vT[0]}")
        Q = self.P
        top, done = self.label("qp"), self.label("qpd")
        A(f"s_mov_b32 s{sTm}, {self.timeout}")
        A(f"{top}:")
        for k in range(8):
            A(f"buffer_load_dwordx4 v[{Q+4*k}:{Q+4*k+3}], v{vT[5]}, s[40:43], s{sT0} offen offset:{1024*(k//2)+16*(k%2)} sc1")
        A(f"v_mov_b32 v{vT[0]}, 0")
        for k in range(8):
            A(f"s_waitcnt vmcnt({7-k})")
            A(f"v_xor_b32 v{vT[1]}, s{sE}, v{Q+4*k+2}")
            A(f"v_xor_b32 v{vT[2]}, s{sE+1}, v{Q+4*k+3}")
            A(f"v_or3_b32 v{vT[0]}, v{vT[0]}, v{vT[1]}, v{vT[2]}")
        A(f"v_cmp_ne_u32 vcc, 0, v{vT[0]}")
        A(f"s_cbranch_vccz {done}")
        A("s_sleep 1")
        A(f"s_sub_u32 s{sTm}, s{sTm}, 1")
        A(f"s_cmp_lg_u32 s{sTm}, 0")
        A(f"s_cbranch_scc1 {top}")
        A(f"{done}:")
        for rr in range(4):
            for e in range(4):
                A(f"v_mov_b32 v{G+4*rr+e}, v{Q+8*rr+4*(e//2)+(e%2)}")
        for k in range(4):
            A(f"v_add_f32 v{G+k}, v{G+k}, v{G+4+k}")
            A(f"v_add_f32 v{G+8+k}, v{G+8+k}, v{G+12+k}")
        for k in range(4):
            A(f"v_add_f32 v{G+k}, v{G+k}, v{G+8+k}")
        A(f"v_cvt_pk_bf16_f32 v{G+4}, v{G}, v{G+1}")
        A(f"v_cvt_pk_bf16_f32 v{G+5}, v{G+2}, v{G+3}")
        A(f"v_lshlrev_b32 v{vT[0]}, 3, v0")
        A(f"ds_write_b64 v{vT[0]}, v[{G+4}:{G+5}] offset:{L_QL}")
        A("s_waitcnt lgkmcnt(0)")
        A("s_barrier")
        self.stamp(4, 40, vT[0], 95)
        self.wait_lds(L_GO, 1, sleep=8)
        self.stamp(3, 40, vT[0], 95)
        FB = self.Wb
        sFin, sFinX = self.sFin, self.sFinX
        skipf = self.label("nofin1")
        A(f"s_and_b32 s{sT0}, s2, 7")
        A(f"s_cmp_eq_u32 s{sT0}, 7")
        A(f"s_cselect_b32 s{self.sHasO}, 1, 0")
        A(f"s_cmp_lt_u32 s2, 72")
        A(f"s_cselect_b32 s{self.sHasO}, s{self.sHasO}, 0")
        A(f"s_cmp_eq_u32 s{self.sHasO}, 0")
        A(f"s_cbranch_scc1 {skipf}")
        A(f"s_lshr_b32 s{sT0}, s2, 3")
        A(f"s_lshl_b32 s{sFinX}, s{sT0}, 7")
        A(f"s_mul_i32 s{sT0}, s{sT0}, {34*512}")
        A(f"s_add_u32 s{sFin}, s{sT0}, {OP_OFF}")
        A(f"s_add_u32 s{sT1}, s{sFin}, {16*512}")
        A(f"s_add_u32 s{sT2}, s{sFin}, {16*512+4096}")
        A(f"s_add_u32 s{sT3}, s{sFin}, {16*512+8192}")

        def issue_ffn():
            for k in range(9):
                sb = (sT1, sT2, sT3)[k // 4]
                A(f"buffer_load_dwordx4 v[{FB+4*k}:{FB+4*k+3}], v{vL16}, s[40:43], s{sb} offen offset:{(k%4)*1024} sc1")
        self.poll(issue_ffn, range(FB, FB + 36), vT[0], sTm, sleep=32)
        for k in range(1, 9):
            for e in range(4):
                A(f"v_add_f32 v{FB+e}, v{FB+e}, v{FB+4*k+e}")
        for e in range(4):
            A(f"v_mov_b32 v{vT[0]}, v{FB+e}")
            A(f"v_permlane32_swap_b32 v{vT[0]}, v{FB+e}")
            A(f"v_add_f32 v{FB+e}, v{FB+e}, v{vT[0]}")
            self.bf16r(FB + e, FB + e)
        A(f"v_bfe_u32 v{vT[0]}, v0, 4, 1")
        A(f"v_mul_u32_u24 v{vT[0]}, 1152, v{vT[0]}")
        A(f"v_and_b32 v{vT[1]}, 15, v0")
        A(f"v_lshl_add_u32 v{FB+8}, v{vT[1]}, 3, v{vT[0]}")
        A(f"buffer_load_dwordx2 v[{FB+10}:{FB+11}], v{FB+8}, s[{sX}:{sX+3}], s{sFinX} offen")
        A("s_waitcnt vmcnt(0)")
        A(f"v_lshlrev_b32 v{FB+4}, 16, v{FB+10}")
        A(f"v_and_b32 v{FB+5}, 0xffff0000, v{FB+10}")
        A(f"v_lshlrev_b32 v{FB+6}, 16, v{FB+11}")
        A(f"v_and_b32 v{FB+7}, 0xffff0000, v{FB+11}")
        self.stamp(5, 40, vT[0], 95)
        A(f"{skipf}:")
        A(f"v_lshrrev_b32 v{vT[1]}, 5, v0")
        A(f"v_lshlrev_b32 v{vT[6]}, 3, v{vT[1]}")
        A(f"s_lshl_b32 s{sT0}, s2, 10")
        A(f"s_add_u32 s{sT0}, s{sT0}, {AP_OFF}")
        A(f"s_lshl_b32 s{sT1}, s2, 4")
        A(f"s_add_u32 s{sT1}, s{sT1}, {APH_OFF}")
        self.wait_lds_done()
        self.stamp(6, 40, vT[0], 95)
        for w in range(4):
            A(f"ds_read_b64 v[{G+16+2*w}:{G+17+2*w}], v{vT[6]} offset:{L_WH+16*w}")
        for w in range(4):
            A(f"ds_read_b128 v[{G+4*w}:{G+4*w+3}], v{vL16} offset:{L_WP+1024*w}")
        A("s_waitcnt lgkmcnt(0)")
        M, Lr, Oc = C, C + 1, C + 4
        self.combine(4, lambda w: G + 4 * w, lambda w: G + 16 + 2 * w, M, Lr, Oc, vT, sLog2e)
        self.sanitize([Oc, Oc + 1, Oc + 2, Oc + 3, M, Lr], vQn)
        A(f"buffer_store_dwordx4 v[{Oc}:{Oc+3}], v{vL16}, s[40:43], s{sT0} offen sc1")
        A("s_mov_b32 exec_lo, 1")
        A("s_mov_b32 exec_hi, 1")
        A(f"buffer_store_dwordx2 v[{M}:{Lr}], v{vT[6]}, s[40:43], s{sT1} offen sc1")
        A("s_mov_b64 exec, -1")
        self.stamp(7, 40, vT[0], 95)
        A(f"s_cmp_eq_u32 s{self.sHasO}, 0")
        A("s_cbranch_scc1 L_end")
        A(f"s_add_u32 s{sT1}, s{sFin}, 4096")
        FA = FB + 12
        self.srd(sX, 34, 2304)

        def issue_fin():
            for k in range(8):
                sb = f"s{sFin}" if k < 4 else f"s{sT1}"
                A(f"buffer_load_dwordx4 v[{FA+4*k}:{FA+4*k+3}], v{vL16}, s[40:43], {sb} offen offset:{(k%4)*1024} sc1")
        self.poll(issue_fin, range(FA, FA + 32), vT[0], sTm, sleep=1)
        for k in (1, 3, 5, 7):
            for e in range(4):
                A(f"v_add_f32 v{FA+4*(k-1)+e}, v{FA+4*(k-1)+e}, v{FA+4*k+e}")
        for k in (2, 6):
            for e in range(4):
                A(f"v_add_f32 v{FA+4*(k-2)+e}, v{FA+4*(k-2)+e}, v{FA+4*k+e}")
        for e in range(4):
            A(f"v_add_f32 v{FA+e}, v{FA+e}, v{FA+16+e}")
        for e in range(4):
            A(f"v_mov_b32 v{FA+4+e}, v{FA+e}")
        for e in range(4):
            A(f"v_permlane32_swap_b32 v{FA+4+e}, v{FA+e}")
        for e in range(4):
            A(f"v_add_f32 v{FA+e}, v{FA+e}, v{FA+4+e}")
        for e in range(4):
            self.bf16r(FA + e, FA + e)
            A(f"v_add_f32 v{FA+e}, v{FB+4+e}, v{FA+e}")
            self.bf16r(FA + e, FA + e)
            A(f"v_add_f32 v{FA+e}, v{FA+e}, v{FB+e}")
        A(f"v_cvt_pk_bf16_f32 v{FA+4}, v{FA}, v{FA+1}")
        A(f"v_cvt_pk_bf16_f32 v{FA+5}, v{FA+2}, v{FA+3}")
        A("s_mov_b32 exec_hi, 0")
        A(f"buffer_store_dwordx2 v[{FA+4}:{FA+5}], v{FB+8}, s[{sX}:{sX+3}], s{sFinX} offen")
        A("s_mov_b64 exec, -1")
        self.stamp(10, 40, vT[0], 95)
        A("s_cmp_lg_u32 s2, 7")
        A("s_cbranch_scc1 L_end")
        A(f"v_mov_b32 v{vT[1]}, s{sE}")
        A(f"v_mov_b32 v{vT[2]}, s{sE+1}")
        A(f"s_mov_b32 s{sT0}, {EPOCH_OFF}")
        A("s_mov_b64 exec, 1")
        A(f"buffer_store_dwordx2 v[{vT[1]}:{vT[2]}], v{vZ}, s[40:43], s{sT0} offen")
        A("s_endpgm")

    def allreduce2(self, v0, t0, v1, t1):
        A = self.A
        dm = "row_mask:0xf bank_mask:0xf"
        for pat in ("quad_perm:[1,0,3,2]", "quad_perm:[2,3,0,1]", "row_half_mirror", "row_mirror"):
            for v in (v0, v1):
                A(f"v_add_f32_dpp v{v}, v{v}, v{v} {pat} {dm}")
        for sw in ("v_permlane16_swap_b32", "v_permlane32_swap_b32"):
            for v, t in ((v0, t0), (v1, t1)):
                A(f"v_mov_b32 v{t}, v{v}")
            for v, t in ((v0, t0), (v1, t1)):
                A(f"{sw} v{t}, v{v}")
            for v, t in ((v0, t0), (v1, t1)):
                A(f"v_add_f32 v{v}, v{v}, v{t}")

    def gu_setup(self):
        A = self.A
        sW, sT0, sT1, sBase, sU = self.sW, self.sT0, self.sT1, self.sBase, self.sU
        A(f"s_cmp_lt_u32 s{sU}, 144")
        A(f"s_cselect_b32 s{sW}, s28, s30")
        A(f"s_cselect_b32 s{sW+1}, s29, s31")
        A(f"s_cselect_b32 s{sT0}, 0, 144")
        A(f"s_and_b32 s{sW+1}, s{sW+1}, 0xffff")
        A(f"s_mov_b32 s{sW+2}, {576*4608*2}")
        A(f"s_mov_b32 s{sW+3}, 0x20000")
        A(f"s_sub_u32 s{sT0}, s{sU}, s{sT0}")
        A(f"s_and_b32 s{sT1}, s{sT0}, 1")
        A(f"s_lshr_b32 s{sT0}, s{sT0}, 1")
        A(f"s_lshl_b32 s{sBase}, s{sT0}, 7")
        A(f"s_mul_i32 s{sT0}, s{sT1}, {288*9216}")
        A(f"s_add_u32 s{sBase}, s{sBase}, s{sT0}")
        A(f"s_mul_i32 s{sT1}, s{sT1}, {36*32}")
        A(f"v_add_u32 v{self.vT[6]}, s{sT1}, v{self.vAct}")

    def auxf(self):
        A = self.A
        vT, U, C = self.vT, self.U, self.C
        vL16, vZ, vQn, vOut, vWoff = self.vL16, self.vZ, self.vQn, self.vOut, self.vWoff
        sW, sDbg, sT0, sT1, sT2, sT3, sTm = self.sW, self.sDbg, self.sT0, self.sT1, self.sT2, self.sT3, self.sTm
        sBase, sLog2e, sGrp, sI, sU = self.sBase, self.sLog2e, self.sGrp, self.sI, self.sU
        sHasD, sHasO, sSlotD, sSlotO, sM32 = self.sHasD, self.sHasO, self.sSlotD, self.sSlotO, self.sM32
        De = self.De
        R = self.R()
        G = U
        A("L_auxf:")
        A("s_setprio 2")
        self.stamp(0, 40, vT[0], 95)
        lab = self.label("noclr")
        A(f"s_cmp_ge_u32 s2, {CLR_AGENTS}")
        A(f"s_cbranch_scc1 {lab}")
        A(f"v_lshlrev_b32 v{vL16}, 4, v0")
        for k in range(4):
            A(f"v_mov_b32 v{De+k}, -1")
        A(f"s_mul_i32 s{sT0}, s2, {CLR_KIB*1024}")
        for k in range(CLR_KIB):
            if k and k % 4 == 0:
                A(f"s_add_u32 s{sT0}, s{sT0}, 4096")
            A(f"buffer_store_dwordx4 v[{De}:{De+3}], v{vL16}, s[40:43], s{sT0} offen offset:{(k%4)*1024} sc1")
        A(f"{lab}:")
        A("s_barrier")
        self.aux_consts()
        self.srd(sDbg, 36, 256)
        A(f"s_lshr_b32 s{sGrp}, s2, 3")
        A(f"s_and_b32 s{sI}, s2, 7")
        A(f"s_mul_i32 s{sU}, s{sGrp}, 9")
        A(f"s_add_u32 s{sU}, s{sU}, s{sI}")
        A(f"s_lshl_b32 s{sT0}, s{sI}, 5")
        A(f"s_add_u32 s{sT0}, s{sT0}, s{sGrp}")
        A(f"s_cmp_lt_u32 s{sT0}, 144")
        A(f"s_cselect_b32 s{sHasO}, 1, 0")
        self.div9(self.sKvO, self.sCbO, sT0)
        A(f"s_mul_i32 s{sT1}, s{self.sCbO}, 34")
        A(f"s_add_u32 s{sT1}, s{sT1}, s{self.sKvO}")
        A(f"s_lshl_b32 s{sT1}, s{sT1}, 9")
        A(f"s_add_u32 s{sSlotO}, s{sT1}, {OP_OFF}")
        A(f"s_sub_u32 s{sT0}, 255, s{sT0}")
        A(f"s_cmp_lt_u32 s{sT0}, 162")
        A(f"s_cselect_b32 s{sHasD}, 1, 0")
        self.div9(self.sRbD, self.sCbD, sT0)
        A(f"s_mul_i32 s{sT1}, s{self.sCbD}, 34")
        A(f"s_add_u32 s{sT1}, s{sT1}, s{self.sRbD}")
        A(f"s_lshl_b32 s{sT1}, s{sT1}, 9")
        A(f"s_add_u32 s{sSlotD}, s{sT1}, {OP_OFF + 16*512}")
        self.aux_consts2()
        A(f"v_mul_u32_u24 v{vWoff}, 9216, v{self.vRow8}")
        A(f"v_add_u32 v{vWoff}, v{vWoff}, v{self.vC16}")
        self.gu_setup()
        lab = self.label("noagent")
        A(f"s_cmp_ge_u32 s2, {CLR_AGENTS}")
        A(f"s_cbranch_scc1 {lab}")
        A(f"v_mov_b32 v{vT[0]}, 1")
        A("s_waitcnt vmcnt(0)")
        A("s_mov_b64 exec, 1")
        A(f"buffer_atomic_add v{vT[0]}, v{vZ}, s[{sDbg}:{sDbg+3}], 0 offen sc0")
        A("s_waitcnt vmcnt(0)")
        A(f"v_cmp_eq_u32 vcc, {CLR_AGENTS-1}, v{vT[0]}")
        A("s_mov_b64 exec, -1")
        A(f"s_cbranch_vccz {lab}")
        A(f"v_mov_b32 v{vT[0]}, 1")
        A("s_mov_b64 exec, 1")
        A(f"buffer_store_dword v{vT[0]}, v{vZ}, s[{sDbg}:{sDbg+3}], 0 offen offset:128 sc1")
        A("s_mov_b64 exec, -1")
        A(f"{lab}:")
        self.stamp(1, 40, vT[0], 95)
        A("s_barrier")
        self.stamp(2, 40, vT[0], 95)
        self.tile_loads(36, self.wreg, vWoff, sW, sBase, 8 * 9216, sT2)
        top, done = self.label("hs"), self.label("hsd")
        A("s_mov_b64 exec, 1")
        A(f"s_mov_b32 s{sTm}, {self.timeout}")
        A(f"{top}:")
        A(f"buffer_load_dword v{vT[0]}, v{vZ}, s[{sDbg}:{sDbg+3}], 0 offen offset:128 sc1")
        A("s_waitcnt vmcnt(0)")
        A(f"v_cmp_ne_u32 vcc, 1, v{vT[0]}")
        A(f"s_cbranch_vccz {done}")
        A(f"s_sleep {self.hs_sleep}")
        A(f"s_sub_u32 s{sTm}, s{sTm}, 1")
        A(f"s_cmp_lg_u32 s{sTm}, 0")
        A(f"s_cbranch_scc1 {top}")
        A(f"{done}:")
        A(f"v_mov_b32 v{vT[0]}, 1")
        A(f"ds_write_b32 v{vZ}, v{vT[0]} offset:{L_GO}")
        A("s_mov_b64 exec, -1")
        A("L_gu:")
        A("s_waitcnt vmcnt(0)")
        self.gemv(36, self.wreg, L_ACTX, dict(R, act=vT[6]))
        A(f"s_lshl_b32 s{sT0}, s{sU}, 9")
        A(f"s_add_u32 s{sT0}, s{sT0}, {GU_OFF}")
        self.gemv_publish(R, sT0)
        A(f"s_cmp_lg_u32 s{sI}, 0")
        A("s_cbranch_scc1 L_gu_done")
        A(f"s_mov_b32 s{sI}, 8")
        A(f"s_add_u32 s{sU}, s{sU}, 8")
        self.gu_setup()
        self.tile_loads(36, self.wreg, vWoff, sW, sBase, 8 * 9216, sT2)
        A("s_branch L_gu")
        A("L_gu_done:")
        self.stamp(3, 40, vT[0], 95)
        A(f"v_mul_u32_u24 v{vWoff}, 1152, v{self.vRow8}")
        A(f"v_add_u32 v{vWoff}, v{vWoff}, v{self.vC16}")
        skip = self.label("nodown")
        A(f"s_cmp_eq_u32 s{sHasD}, 0")
        A(f"s_cbranch_scc1 {skip}")
        self.srd(sW, 32, 4608 * 576 * 2)
        A(f"s_mul_i32 s{sBase}, s{self.sRbD}, {256*1152}")
        A(f"s_lshl_b32 s{sT0}, s{self.sCbD}, 7")
        A(f"s_add_u32 s{sBase}, s{sBase}, s{sT0}")
        self.tile_loads(32, self.wreg, vWoff, sW, sBase, 8 * 1152, sT2)
        A(f"v_lshrrev_b32 v{vT[0]}, 4, v0")
        A(f"v_lshlrev_b32 v{vT[0]}, 10, v{vT[0]}")
        A(f"v_and_b32 v{vT[1]}, 15, v0")
        A(f"v_lshl_add_u32 v{vT[5]}, v{vT[1]}, 4, v{vT[0]}")
        A(f"s_lshl_b32 s{sT0}, s{self.sRbD}, 12")
        A(f"s_add_u32 s{sT0}, s{sT0}, {GU_OFF}")
        A(f"s_add_u32 s{sT1}, s{sT0}, {144*512}")

        def issue_gu():
            for hf in range(2):
                for b in range(2):
                    o = G + 16 * hf + 8 * b
                    A(f"buffer_load_dwordx4 v[{o}:{o+3}], v{vT[5]}, s[40:43], s{sT0} offen offset:{512*hf+256*b} sc1")
                    A(f"buffer_load_dwordx4 v[{o+4}:{o+7}], v{vT[5]}, s[40:43], s{sT1} offen offset:{512*hf+256*b} sc1")
        self.poll(issue_gu, range(G, G + 32), vT[0], sTm, sleep=8)
        for k in range(16):
            A(f"v_add_f32 v{G+k}, v{G+k}, v{G+16+k}")
        c1 = f32(0.044715)
        c2 = f32(-2.0 * 0.7978845608028654 * LOG2E)
        A(f"s_mov_b32 s{sT2}, {c1}")
        A(f"s_mov_b32 s{sT3}, {c2}")
        for b in range(2):
            for k in range(4):
                g, u = G + 8 * b + k, G + 8 * b + 4 + k
                t0, t1 = vT[0], vT[1]
                A(f"v_cvt_pk_bf16_f32 v{t0}, v{g}, v{u}")
                A(f"v_lshlrev_b32 v{g}, 16, v{t0}")
                A(f"v_and_b32 v{u}, 0xffff0000, v{t0}")
                A(f"v_mul_f32 v{t0}, v{g}, v{g}")
                A(f"v_mul_f32 v{t0}, v{t0}, v{g}")
                A(f"v_fma_f32 v{t0}, v{t0}, s{sT2}, v{g}")
                A(f"v_mul_f32 v{t0}, s{sT3}, v{t0}")
                A(f"v_exp_f32 v{t0}, v{t0}")
                A(f"v_add_f32 v{t0}, 1.0, v{t0}")
                A(f"v_rcp_f32 v{t1}, v{t0}")
                A(f"v_mul_f32 v{g}, v{g}, v{t1}")
                self.bf16r(g, g)
                A(f"v_mul_f32 v{g}, v{g}, v{u}")
            A(f"v_cvt_pk_bf16_f32 v{C+2*b}, v{G+8*b}, v{G+8*b+1}")
            A(f"v_cvt_pk_bf16_f32 v{C+2*b+1}, v{G+8*b+2}, v{G+8*b+3}")
        A(f"v_lshrrev_b32 v{vT[0]}, 1, v0")
        A(f"v_lshlrev_b32 v{vT[0]}, 5, v{vT[0]}")
        A(f"v_and_b32 v{vT[1]}, 1, v0")
        A(f"v_lshl_add_u32 v{vT[0]}, v{vT[1]}, 3, v{vT[0]}")
        A(f"ds_write_b64 v{vT[0]}, v[{C}:{C+1}] offset:{L_ACTT}")
        A(f"ds_write_b64 v{vT[0]}, v[{C+2}:{C+3}] offset:{L_ACTT+16}")
        A("s_waitcnt lgkmcnt(0)")
        self.gemv(32, self.wreg, L_ACTT, R)
        self.gemv_publish(R, sSlotD)
        A(f"{skip}:")
        self.stamp(5, 40, vT[0], 95)
        A(f"s_cmp_eq_u32 s{sHasO}, 0")
        A("s_cbranch_scc1 L_end")
        self.srd(sW, 24, 4096 * 576 * 2)
        A(f"s_mul_i32 s{sBase}, s{self.sKvO}, {256*1152}")
        A(f"s_lshl_b32 s{sT0}, s{self.sCbO}, 7")
        A(f"s_add_u32 s{sBase}, s{sBase}, s{sT0}")
        self.tile_loads(32, self.wreg, vWoff, sW, sBase, 8 * 1152, sT2)
        A(f"v_lshrrev_b32 v{vT[0]}, 5, v0")
        A(f"v_lshlrev_b32 v{vT[6]}, 3, v{vT[0]}")
        A(f"v_lshlrev_b32 v{vT[4]}, 9, v{vT[0]}")
        A(f"v_and_b32 v{vT[0]}, 15, v0")
        A(f"v_lshl_add_u32 v{vT[4]}, v{vT[0]}, 5, v{vT[4]}")
        A(f"v_bfe_u32 v{vT[0]}, v0, 4, 1")
        A(f"v_lshl_add_u32 v{vT[4]}, v{vT[0]}, 3, v{vT[4]}")
        sA = [82, 83, 84, 85]; sH = [86, 87]
        for b in range(2):
            A(f"s_lshl_b32 s{sT1}, s{self.sKvO}, 13")
            A(f"s_add_u32 s{sA[2*b]}, s{sT1}, {AP_OFF + b*16*8*1024}")
            A(f"s_add_u32 s{sA[2*b+1]}, s{sA[2*b]}, 4096")
            A(f"s_lshl_b32 s{sT1}, s{self.sKvO}, 7")
            A(f"s_add_u32 s{sH[b]}, s{sT1}, {APH_OFF + b*2048}")
        self.wait_lds_done()
        self.stamp(6, 40, vT[0], 95)

        def issue_o():
            for b in range(2):
                Gb = G + 48 * b
                for i in range(8):
                    A(f"buffer_load_dwordx2 v[{Gb+32+2*i}:{Gb+33+2*i}], v{vT[6]}, s[40:43], s{sH[b]} offen offset:{16*i} sc1")
            for b in range(2):
                Gb = G + 48 * b
                for i in range(8):
                    A(f"buffer_load_dwordx4 v[{Gb+4*i}:{Gb+4*i+3}], v{vL16}, s[40:43], s{sA[2*b+i//4]} offen offset:{(i%4)*1024} sc1")
        self.poll(issue_o, range(G, G + 96), vT[0], sTm, sleep=1)
        self.stamp(8, 40, vT[0], 95)
        for b in range(2):
            Gb = G + 48 * b
            M, Lr, Oc = C, C + 1, C + 4
            self.combine(8, lambda w: Gb + 4 * w, lambda w: Gb + 32 + 2 * w, M, Lr, Oc, vT, sLog2e)
            A(f"v_rcp_f32 v{vT[0]}, v{Lr}")
            for e in range(4):
                A(f"v_mul_f32 v{vT[1]}, v{Oc+e}, v{vT[0]}")
                A(f"v_fma_f32 v{vT[2]}, -v{vT[1]}, v{Lr}, v{Oc+e}")
                A(f"v_fma_f32 v{Oc+e}, v{vT[2]}, v{vT[0]}, v{vT[1]}")
            A(f"v_cvt_pk_bf16_f32 v{C+2}, v{Oc}, v{Oc+1}")
            A(f"v_cvt_pk_bf16_f32 v{C+3}, v{Oc+2}, v{Oc+3}")
            A(f"ds_write_b64 v{vT[4]}, v[{C+2}:{C+3}] offset:{L_ACTT+16*b}")
        A("s_waitcnt lgkmcnt(0)")
        self.gemv(32, self.wreg, L_ACTT, R)
        self.gemv_publish(R, sSlotO)
        self.stamp(9, 40, vT[0], 95)
        A("L_end:")
        A("s_endpgm")

    def combine(self, n, oreg, hreg, M, Lr, Oc, vT, sLog2e):
        A = self.A
        ms = [hreg(w) for w in range(n)]
        A(f"v_max3_f32 v{M}, v{ms[0]}, v{ms[1]}, v{ms[2]}")
        k = 3
        while k < n:
            if k + 1 < n:
                A(f"v_max3_f32 v{M}, v{M}, v{ms[k]}, v{ms[k+1]}")
                k += 2
            else:
                A(f"v_max_f32 v{M}, v{M}, v{ms[k]}")
                k += 1
        for w in range(n):
            A(f"v_sub_f32 v{ms[w]}, v{ms[w]}, v{M}")
            A(f"v_mul_f32 v{ms[w]}, s{sLog2e}, v{ms[w]}")
        for w in range(n):
            A(f"v_exp_f32 v{ms[w]}, v{ms[w]}")
        A(f"v_mul_f32 v{Lr}, v{ms[0]}, v{ms[0]+1}")
        for e in range(4):
            A(f"v_mul_f32 v{Oc+e}, v{ms[0]}, v{oreg(0)+e}")
        for w in range(1, n):
            A(f"v_fmac_f32 v{Lr}, v{ms[w]}, v{ms[w]+1}")
            for e in range(4):
                A(f"v_fmac_f32 v{Oc+e}, v{ms[w]}, v{oreg(w)+e}")

    def footer(self):
        nv = max(self.stream_vgprs, self.aux_vgprs)
        nv = max(nv, 176)
        self.A(f""".section .rodata,"a"
.p2align 6
.amdhsa_kernel {KNAME}
  .amdhsa_next_free_vgpr {nv}
  .amdhsa_next_free_sgpr 102
  .amdhsa_accum_offset {(nv+3)//4*4}
  .amdhsa_group_segment_fixed_size 0
  .amdhsa_kernarg_size 96
  .amdhsa_user_sgpr_count 2
  .amdhsa_user_sgpr_kernarg_segment_ptr 1
  .amdhsa_system_sgpr_workgroup_id_x 1
  .amdhsa_float_denorm_mode_32 3
.end_amdhsa_kernel""")

    def build(self):
        self.header()
        self.stream()
        self.auxq()
        self.auxf()
        self.footer()
        out, nops = hazard.run(self.L)
        return "\n".join(out) + "\n"


def gen(**kw):
    return Gen(**kw).build()


if __name__ == "__main__":
    kw = eval("dict(%s)" % (sys.argv[2] if len(sys.argv) > 2 else ""))
    open(sys.argv[1], "w").write(gen(**kw))
```

```python
import struct
import sys
import hazard

KNAME = "parallel_sum__gqa_block_cached__geglu_ffn__decode_kernel"

GU_OFF = 0x00000
AP_OFF = 0x24000
APH_OFF = 0x64000
OP_OFF = 0x65000
CNT_OFF = 0x8B400
CLR_AGENTS = 32
CLR_KIB = 18
assert CNT_OFF + 8192 <= CLR_AGENTS * CLR_KIB * 1024
QP_OFF = 0x90000
EPOCH_OFF = 0xD0000
TS_OFF = 0xE0000
WS_SIZE = 0x100000

L_ACTX = 0
L_QL = 2560
L_ACTT = 3072
L_WP = 4096
L_WH = 8192
L_CNT = 8256
L_GO = 8260
LDS_BYTES = 8448

SENT = 0xFFFFFFFF


def f32(x):
    return "0x%08x" % struct.unpack("<I", struct.pack("<f", x))[0]


LOG2E = 1.4426950408889634
SCALE = 128 ** -0.5


class Gen:
    def __init__(self, NS=26, CH=8, stamps=False, timeout=200000, dyn=True, sleep=2, hs_sleep=4, stash=True, pace=8, report=False):
        self.report = report
        self.stash, self.pace = stash, pace
        self.hs_sleep = hs_sleep
        self.L = []
        self.NS, self.CH, self.stamps, self.timeout, self.dyn, self.sleep = NS, CH, stamps, timeout, dyn, sleep
        self.uid = 0

    def A(self, s):
        self.L.append(s)

    def label(self, base):
        self.uid += 1
        return f"L_{base}_{self.uid}"

    def srd(self, d, lo, size):
        A = self.A
        A(f"s_mov_b32 s{d}, s{lo}")
        A(f"s_and_b32 s{d+1}, s{lo+1}, 0xffff")
        A(f"s_mov_b32 s{d+2}, {size}")
        A(f"s_mov_b32 s{d+3}, 0x20000")

    def stamp(self, idx, srd, vtmp, sbase):
        if not self.stamps:
            return
        A = self.A
        A("s_memrealtime s[96:97]")
        A("s_waitcnt lgkmcnt(0)")
        A(f"v_mov_b32 v{vtmp}, s96")
        A(f"v_mov_b32 v{vtmp+1}, 0")
        A("s_mov_b64 s[98:99], exec")
        A("s_mov_b64 exec, 1")
        A(f"buffer_store_dword v{vtmp}, v{vtmp+1}, s[{srd}:{srd+3}], s{sbase} offen offset:{idx*4}")
        A("s_mov_b64 exec, s[98:99]")

    def allreduce_rows(self, op, v, t):
        A = self.A
        A(f"v_mov_b32 v{t}, v{v}")
        A(f"v_permlane16_swap_b32 v{t}, v{v}")
        A(f"{op} v{v}, v{v}, v{t}")
        A(f"v_mov_b32 v{t}, v{v}")
        A(f"v_permlane32_swap_b32 v{t}, v{v}")
        A(f"{op} v{v}, v{v}, v{t}")

    def allreduce_wave_add(self, v, t):
        A = self.A
        dm = "row_mask:0xf bank_mask:0xf"
        A(f"v_add_f32_dpp v{v}, v{v}, v{v} quad_perm:[1,0,3,2] {dm}")
        A(f"v_add_f32_dpp v{v}, v{v}, v{v} quad_perm:[2,3,0,1] {dm}")
        A(f"v_add_f32_dpp v{v}, v{v}, v{v} row_half_mirror {dm}")
        A(f"v_add_f32_dpp v{v}, v{v}, v{v} row_mirror {dm}")
        self.allreduce_rows("v_add_f32", v, t)

    def bf16r(self, d, s):
        self.A(f"v_cvt_pk_bf16_f32 v{d}, v{s}, v{s}")
        self.A(f"v_lshlrev_b32 v{d}, 16, v{d}")

    def sanitize(self, regs, vq):
        for r in regs:
            self.A(f"v_cmp_ne_u32 vcc, -1, v{r}")
            self.A(f"v_cndmask_b32 v{r}, v{vq}, v{r}, vcc")

    def any_sentinel(self, regs, t):
        A = self.A
        regs = list(regs)
        if len(regs) == 1:
            A(f"v_cmp_eq_u32 vcc, -1, v{regs[0]}")
            return
        if len(regs) == 2:
            A(f"v_max_u32 v{t}, v{regs[0]}, v{regs[1]}")
            rest = []
        else:
            A(f"v_max3_u32 v{t}, v{regs[0]}, v{regs[1]}, v{regs[2]}")
            rest = regs[3:]
        while rest:
            if len(rest) >= 2:
                A(f"v_max3_u32 v{t}, v{t}, v{rest[0]}, v{rest[1]}")
                rest = rest[2:]
            else:
                A(f"v_max_u32 v{t}, v{t}, v{rest[0]}")
                rest = rest[1:]
        A(f"v_cmp_eq_u32 vcc, -1, v{t}")

    def poll(self, issue, check_regs, t, stmo, sleep=None):
        A = self.A
        top, done = self.label("poll"), self.label("polld")
        A(f"s_mov_b32 s{stmo}, {self.timeout}")
        A(f"{top}:")
        issue()
        A("s_waitcnt vmcnt(0)")
        self.any_sentinel(check_regs, t)
        A(f"s_cbranch_vccz {done}")
        A(f"s_sleep {self.sleep if sleep is None else sleep}")
        A(f"s_sub_u32 s{stmo}, s{stmo}, 1")
        A(f"s_cmp_lg_u32 s{stmo}, 0")
        A(f"s_cbranch_scc1 {top}")
        A(f"{done}:")

    def header(self):
        A = self.A
        A(f"; @launch grid=(256,1,1) block=(384,1,1) lds={LDS_BYTES}")
        A('.amdgcn_target "amdgcn-amd-amdhsa--gfx950"')
        A(".text")
        A(f".globl {KNAME}")
        A(".p2align 8")
        A(f".type {KNAME},@function")
        A(f"{KNAME}:")
        A("s_cmp_ge_u32 s2, 256")
        A("s_cbranch_scc1 L_end")
        A("s_load_dwordx16 s[16:31], s[0:1], 0")
        A("s_load_dwordx8 s[32:39], s[0:1], 64")
        A("v_lshrrev_b32 v1, 6, v0")
        A("v_readfirstlane_b32 s3, v1")
        A("v_and_b32 v0, 63, v0")
        A("s_waitcnt lgkmcnt(0)")
        self.srd(40, 38, WS_SIZE)
        if self.stamps:
            A("s_lshl_b32 s95, s2, 3")
            A("s_add_u32 s95, s95, s3")
            A("s_lshl_b32 s95, s95, 6")
            A(f"s_add_u32 s95, s95, {TS_OFF}")
        A("s_cmp_eq_u32 s3, 4")
        A("s_cbranch_scc1 L_auxq")
        A("s_cmp_eq_u32 s3, 5")
        A("s_cbranch_scc1 L_auxf")

    def stream(self):
        A = self.A
        CH, NS = self.CH, self.NS
        NCH = (8 << 20) // (CH * 1024)
        PERWG = NCH // 8
        CB = CH * 1024
        nblk = (CH + 3) // 4
        vKo = [2 + i for i in range(nblk)]
        vVo = [2 + nblk + i for i in range(nblk)]
        r = 2 + 2 * nblk
        vZ, vCl = r, r + 1
        r += 2
        vM, vL, vNML, vMx, vT0, vT1, vT2 = r, r + 1, r + 2, r + 3, r + 4, r + 5, r + 6
        r += 7
        r = (r + 3) // 4 * 4
        vQ = r; r += 4
        vMask = r; r += 4
        vO = r; r += 4
        vA = [r, r + 4]; r += 8
        vS = r; r += CH
        r = (r + 3) // 4 * 4
        vD = r; r += 4 * CH
        vK = r; r += 4 * CH
        vV = r; r += 4 * CH
        vSK = r; vSV = r + 4 * CH
        if self.stash:
            r += 8 * CH
        self.stream_vgprs = r
        sK, sV = 44, 48
        sGb, sCnt, sCur, sNxt, sStep, sOff = 52, 53, 54, 55, 56, 57
        sT0, sT1, sT2 = 58, 59, 60
        sLog2e, sScale = 61, 62
        sHm = 64
        self.srd(sK, 18, 256 << 20)
        self.srd(sV, 20, 256 << 20)
        self.stamp(0, 40, vT0, 95)
        A(f"s_lshr_b32 s{sT0}, s2, 3")
        A(f"s_lshl_b32 s{sGb}, s{sT0}, 23")
        A(f"s_lshl_b32 s{sCnt}, s{sT0}, 8")
        A(f"s_add_u32 s{sCnt}, s{sCnt}, {CNT_OFF}")
        A(f"s_and_b32 s{sT0}, s2, 7")
        A(f"s_lshl_b32 s{sT0}, s{sT0}, 2")
        A(f"s_add_u32 s{sCur}, s{sT0}, s3")
        A(f"s_add_u32 s{sNxt}, s{sCur}, 32")
        A(f"s_mov_b32 s{sStep}, 0")
        A(f"v_bfe_u32 v{vT0}, v0, 2, 2")
        A(f"v_lshlrev_b32 v{vT0}, 8, v{vT0}")
        A(f"v_lshrrev_b32 v{vT1}, 4, v0")
        A(f"v_lshl_add_u32 v{vT0}, v{vT1}, 6, v{vT0}")
        A(f"v_and_b32 v{vT1}, 3, v0")
        A(f"v_lshl_add_u32 v{vT0}, v{vT1}, 4, v{vT0}")
        A(f"v_lshlrev_b32 v{vT1}, 4, v0")
        for i in range(nblk):
            A(f"v_add_u32 v{vKo[i]}, {4096*i}, v{vT0}")
            A(f"v_add_u32 v{vVo[i]}, {4096*i}, v{vT1}")

        def addr(sid):
            A(f"s_lshr_b32 s{sT0}, s{sid}, 5")
            A(f"s_and_b32 s{sT1}, s{sid}, 31")
            A(f"s_lshr_b32 s{sT2}, s{sT1}, 2")
            A(f"s_and_b32 s{sT1}, s{sT1}, 3")
            A(f"s_mul_i32 s{sT2}, s{sT2}, {PERWG}")
            A(f"s_lshl_b32 s{sT0}, s{sT0}, 2")
            A(f"s_add_u32 s{sT2}, s{sT2}, s{sT0}")
            A(f"s_add_u32 s{sT2}, s{sT2}, s{sT1}")
            A(f"s_mul_i32 s{sOff}, s{sT2}, {CB}")
            A(f"s_add_u32 s{sOff}, s{sOff}, s{sGb}")

        def ldK(i, base=None):
            base = vK if base is None else base
            A(f"buffer_load_dwordx4 v[{base+4*i}:{base+4*i+3}], v{vKo[i//4]}, s[{sK}:{sK+3}], s{sOff} offen offset:{(i%4)*1024} nt")

        def ldV(i, base=None):
            base = vV if base is None else base
            A(f"buffer_load_dwordx4 v[{base+4*i}:{base+4*i+3}], v{vVo[i//4]}, s[{sV}:{sV+3}], s{sOff} offen offset:{(i%4)*1024} nt")

        addr(sCur)
        A("s_barrier")
        seq = []
        if self.stash:
            seq += [("K", i, vSK) for i in range(CH)] + [("V", i, vSV) for i in range(CH)] + [("next",)]
        seq += [("K", i, vK) for i in range(CH)] + [("V", i, vV) for i in range(CH)]
        n_issued = 0
        consts_done = False

        def consts():
            A(f"s_mov_b32 s{sLog2e}, {f32(LOG2E)}")
            A(f"s_mov_b32 s{sScale}, {f32(SCALE)}")
            A(f"s_mov_b32 s{sHm}, 0x00ff00ff")
            A(f"s_mov_b32 s{sHm+1}, 0xff00ff00")
            A(f"v_mov_b32 v{vZ}, 0")
            for i in range(4):
                A(f"v_mov_b32 v{vO+i}, 0")
            A(f"v_mov_b32 v{vM}, 0xff7fffff")
            A(f"v_mov_b32 v{vL}, 0")
            A(f"v_mov_b32 v{vNML}, 0")
            A(f"v_and_b32 v{vT0}, 1, v0")
            A(f"v_cmp_eq_u32 vcc, 1, v{vT0}")
            A(f"v_mov_b32 v{vT1}, 0xffff0000")
            A(f"v_mov_b32 v{vT2}, 0xffff")
            A(f"v_cndmask_b32 v{vT1}, v{vT2}, v{vT1}, vcc")
            A(f"v_bfe_u32 v{vT0}, v0, 1, 2")
            for i in range(4):
                A(f"v_cmp_eq_u32 vcc, {i}, v{vT0}")
                A(f"v_cndmask_b32 v{vMask+i}, v{vZ}, v{vT1}, vcc")
            A(f"v_bfe_u32 v{vT0}, v0, 3, 1")
            A(f"v_lshlrev_b32 v{vT0}, 8, v{vT0}")
            A(f"v_lshrrev_b32 v{vT1}, 4, v0")
            A(f"v_lshl_add_u32 v{vT0}, v{vT1}, 6, v{vT0}")
            A(f"v_and_b32 v{vT1}, 3, v0")
            A(f"v_lshl_add_u32 v{vT0}, v{vT1}, 4, v{vT0}")
        for op in seq:
            if op[0] == "next":
                A(f"s_mov_b32 s{sCur}, s{sNxt}")
                A(f"s_add_u32 s{sNxt}, s{sNxt}, 32")
                A(f"s_mov_b32 s{sStep}, 1")
                addr(sCur)
                continue
            if n_issued >= self.pace:
                if not consts_done:
                    consts()
                    consts_done = True
                A(f"s_waitcnt vmcnt({self.pace-1})")
            (ldK if op[0] == "K" else ldV)(op[1], op[2])
            n_issued += 1
        if not consts_done:
            consts()
        A("s_barrier")
        A(f"ds_read_b128 v[{vQ}:{vQ+3}], v{vT0} offset:{L_QL}")
        self.stamp(1, 40, vT1, 95)
        A("s_waitcnt lgkmcnt(0)")
        W = 2 * CH - 1
        dm = "row_mask:0xf bank_mask:0xf"

        def body(kb, vb, refill, wK, wV):
            nores = self.label("norescale")
            for i in range(CH):
                A(f"s_waitcnt vmcnt({wK(i)})")
                A(f"v_mfma_f32_16x16x32_bf16 v[{vD+4*i}:{vD+4*i+3}], v[{kb+4*i}:{kb+4*i+3}], v[{vQ}:{vQ+3}], 0")
                if refill:
                    ldK(i, kb)
            for i in range(0, CH, 2):
                for k in (i, i + 1):
                    d = vD + 4 * k
                    A(f"v_mov_b32_dpp v{vS+k}, v{d} quad_perm:[0,0,0,0] {dm}")
                    A(f"v_add_f32_dpp v{vS+k}, v{d+1}, v{vS+k} quad_perm:[1,1,1,1] {dm}")
                    A(f"v_add_f32_dpp v{vS+k}, v{d+2}, v{vS+k} quad_perm:[2,2,2,2] {dm}")
                    A(f"v_add_f32_dpp v{vS+k}, v{d+3}, v{vS+k} quad_perm:[3,3,3,3] {dm}")
                a, b = vS + i, vS + i + 1
                A(f"v_cvt_pk_bf16_f32 v{vT0}, v{a}, v{b}")
                A(f"v_lshlrev_b32 v{a}, 16, v{vT0}")
                A(f"v_and_b32 v{b}, 0xffff0000, v{vT0}")
                A(f"v_mul_f32 v{a}, s{sScale}, v{a}")
                A(f"v_mul_f32 v{b}, s{sScale}, v{b}")
                A(f"v_cvt_pk_bf16_f32 v{vT0}, v{a}, v{b}")
                A(f"v_lshlrev_b32 v{a}, 16, v{vT0}")
                A(f"v_and_b32 v{b}, 0xffff0000, v{vT0}")
            A(f"v_max3_f32 v{vMx}, v{vS}, v{vS+1}, v{vS+2}")
            k = 3
            while k < CH:
                if k + 1 < CH:
                    A(f"v_max3_f32 v{vMx}, v{vMx}, v{vS+k}, v{vS+k+1}")
                    k += 2
                else:
                    A(f"v_max_f32 v{vMx}, v{vMx}, v{vS+k}")
                    k += 1
            A(f"v_cmp_gt_f32 vcc, v{vMx}, v{vM}")
            A(f"s_cbranch_vccz {nores}")
            self.allreduce_rows("v_max_f32", vMx, vT0)
            A(f"v_max_f32 v{vMx}, v{vMx}, v{vM}")
            A(f"v_sub_f32 v{vT0}, v{vM}, v{vMx}")
            A(f"v_mul_f32 v{vT0}, s{sLog2e}, v{vT0}")
            A(f"v_exp_f32 v{vT0}, v{vT0}")
            A(f"v_mov_b32 v{vM}, v{vMx}")
            A(f"v_mul_f32 v{vNML}, s{sLog2e}, v{vMx}")
            A(f"v_sub_f32 v{vNML}, 0, v{vNML}")
            A(f"v_mul_f32 v{vL}, v{vL}, v{vT0}")
            A(f"v_mov_b32_dpp v{vT1}, v{vT0} row_ror:8 {dm}")
            A(f"v_cndmask_b32 v{vT1}, v{vT1}, v{vT0}, s[{sHm}:{sHm+1}]")
            for i in range(4):
                A(f"v_mul_f32 v{vO+i}, v{vO+i}, v{vT1}")
            A(f"{nores}:")
            for i in range(CH):
                A(f"v_fma_f32 v{vS+i}, v{vS+i}, s{sLog2e}, v{vNML}")
            for i in range(CH):
                A(f"v_exp_f32 v{vS+i}, v{vS+i}")
            for i in range(CH):
                A(f"v_add_f32 v{vL}, v{vL}, v{vS+i}")
                A(f"v_cvt_pk_bf16_f32 v{vS+i}, v{vS+i}, v{vS+i}")

            def buildA(i):
                for rr in range(4):
                    A(f"v_and_b32 v{vA[i%2]+rr}, v{vMask+rr}, v{vS+i}")
            buildA(0)
            for i in range(CH):
                if i + 1 < CH:
                    buildA(i + 1)
                A(f"s_waitcnt vmcnt({wV(i)})")
                a = vA[i % 2]
                A(f"v_mfma_f32_16x16x32_bf16 v[{vO}:{vO+3}], v[{a}:{a+3}], v[{vb+4*i}:{vb+4*i+3}], v[{vO}:{vO+3}]")
                if refill:
                    ldV(i, vb)

        if self.stash:
            body(vSK, vSV, False, lambda i: 4 * CH - 1 - i, lambda i: 3 * CH - 1 - i)
        A("L_loop:")
        if self.dyn:
            A(f"s_cmp_lt_u32 s{sStep}, {NS-2}")
            A("s_cbranch_scc1 L_noclaim")
            A(f"s_mov_b32 s{sT0}, {self.timeout*8}")
            A("L_gowait:")
            A(f"ds_read_b32 v{vCl}, v{vZ} offset:{L_GO}")
            A("s_waitcnt lgkmcnt(0)")
            A(f"v_cmp_ne_u32 vcc, 1, v{vCl}")
            A("s_cbranch_vccz L_goseen")
            A("s_sleep 8")
            A(f"s_sub_u32 s{sT0}, s{sT0}, 1")
            A(f"s_cmp_lg_u32 s{sT0}, 0")
            A("s_cbranch_scc1 L_gowait")
            A("L_goseen:")
            A("s_mov_b64 exec, 1")
            A(f"v_mov_b32 v{vCl}, 1")
            A(f"buffer_atomic_add v{vCl}, v{vZ}, s[40:43], s{sCnt} offen sc0")
            A("s_mov_b64 exec, -1")
            A("L_noclaim:")
        addr(sNxt)
        A(f"s_cmp_lt_u32 s{sNxt}, {NCH}")
        A(f"s_cselect_b32 s{sOff}, s{sOff}, 0x80000000")
        body(vK, vV, True, lambda i: W, lambda i: W)
        A(f"s_mov_b32 s{sCur}, s{sNxt}")
        A(f"s_add_u32 s{sNxt}, s{sNxt}, 32")
        if self.dyn:
            A(f"s_cmp_lt_u32 s{sStep}, {NS-2}")
            A("s_cbranch_scc1 L_static")
            A(f"v_readfirstlane_b32 s{sNxt}, v{vCl}")
            A(f"s_add_u32 s{sNxt}, s{sNxt}, {NS*32+1}")
            A("L_static:")
        A(f"s_add_u32 s{sStep}, s{sStep}, 1")
        A(f"s_cmp_lt_u32 s{sCur}, {NCH}")
        A("s_cbranch_scc1 L_loop")
        self.stamp(2, 40, vT1, 95)
        self.allreduce_rows("v_add_f32", vL, vT0)
        A(f"s_lshl_b32 s{sT0}, s3, 10")
        A(f"v_lshlrev_b32 v{vT0}, 4, v0")
        A(f"v_add_u32 v{vT0}, s{sT0}, v{vT0}")
        A(f"ds_write_b128 v{vT0}, v[{vO}:{vO+3}] offset:{L_WP}")
        A(f"s_lshl_b32 s{sT0}, s3, 4")
        A(f"v_add_u32 v{vT0}, s{sT0}, v0")
        assert vL == vM + 1 and vM % 2 == 0, (vM, vL)
        A("s_mov_b64 exec, 0x101")
        A(f"ds_write_b64 v{vT0}, v[{vM}:{vL}] offset:{L_WH}")
        A("s_mov_b64 exec, 1")
        A(f"v_mov_b32 v{vT1}, 1")
        A("s_waitcnt lgkmcnt(0)")
        A(f"ds_add_u32 v{vZ}, v{vT1} offset:{L_CNT}")
        A("s_endpgm")

    def gemv(self, J, wreg, act_off, R, first=True):
        A = self.A
        vP, vAct, sE, sO, vAe, De, Do = R["P"], R["act"], R["selE"], R["selO"], R["Aset"], R["De"], R["Do"]
        for j in range(J):
            A(f"ds_read_b32 v{vP+j}, v{vAct} offset:{act_off+32*j}")

        def perms(j):
            s = vAe + 8 * (j % 2)
            for rr in range(4):
                A(f"v_perm_b32 v{s+rr}, v{vP+j}, v{vP+j}, v{sE+rr}")
            for rr in range(4):
                A(f"v_perm_b32 v{s+4+rr}, v{vP+j}, v{vP+j}, v{sO+rr}")
        A("s_waitcnt lgkmcnt(0)")
        perms(0)
        for j in range(J):
            if j + 1 < J:
                perms(j + 1)
            s = vAe + 8 * (j % 2)
            w = wreg(j)
            ce = "0" if (first and j == 0) else f"v[{De}:{De+3}]"
            co = "0" if (first and j == 0) else f"v[{Do}:{Do+3}]"
            A(f"v_mfma_f32_16x16x32_bf16 v[{De}:{De+3}], v[{s}:{s+3}], v[{w}:{w+3}], {ce}")
            A(f"v_mfma_f32_16x16x32_bf16 v[{Do}:{Do+3}], v[{s+4}:{s+7}], v[{w}:{w+3}], {co}")

    def gemv_publish(self, R, soff):
        A = self.A
        De, Do = R["De"], R["Do"]
        dm = "row_mask:0xf bank_mask:0xf"
        for rr in range(4):
            A(f"v_add_f32_dpp v{De+rr}, v{Do+rr}, v{De+rr} row_ror:8 {dm}")
        self.sanitize(range(De, De + 4), R["qnan"])
        A(f"s_mov_b64 exec, s[{R['m32']}:{R['m32']+1}]")
        A(f"buffer_store_dwordx4 v[{De}:{De+3}], v{R['outoff']}, s[40:43], s{soff} offen sc1")
        A("s_mov_b64 exec, -1")

    def tile_loads(self, J, wreg, vWoff, sW, sbase, step, stmp, j0=0, pol="nt"):
        A = self.A
        for j in range(J):
            A(f"s_add_u32 s{stmp}, s{sbase}, {(j0+j)*step}")
            w = wreg(j)
            A(f"buffer_load_dwordx4 v[{w}:{w+3}], v{vWoff}, s[{sW}:{sW+3}], s{stmp} offen {pol}")

    vRow8, vC16, vWoff, vAct, vOut, vL16, vQn, vZ = 1, 2, 3, 4, 5, 6, 7, 8
    vT = [9, 10, 11, 12, 13, 14, 15]
    selE, selO = 16, 20
    U = 24
    Aset, De, Do, P = 24, 40, 44, 48
    C = 120
    Wb = 128
    sW, sX, sDbg = 44, 48, 52
    sM32 = 56
    sT0, sT1, sT2, sT3, sTm, sB, sKvh = 58, 59, 60, 61, 62, 63, 64
    sSlotQ, sU, sSlotD, sSlotO, sBase = 65, 66, 67, 68, 69
    sLog2e = 70
    sNG, sHasD, sHasO = 71, 72, 73
    sRbD, sCbD, sKvO, sCbO, sGrp, sI = 74, 75, 76, 77, 78, 79
    sFin, sFinX = 80, 81

    def wreg(self, j):
        return self.Wb + 4 * j if j < 32 else 84 + 4 * (j - 32)

    def R(self):
        return dict(P=self.P, act=self.vAct, selE=self.selE, selO=self.selO, Aset=self.Aset, De=self.De, Do=self.Do,
                    qnan=self.vQn, m32=self.sM32, outoff=self.vOut)

    def aux_consts(self):
        A = self.A
        vT = self.vT
        A(f"v_lshrrev_b32 v{self.vRow8}, 3, v0")
        A(f"v_and_b32 v{self.vC16}, 7, v0")
        A(f"v_lshlrev_b32 v{self.vC16}, 4, v{self.vC16}")
        A(f"v_lshlrev_b32 v{self.vL16}, 4, v0")
        A(f"s_mov_b32 s{self.sM32}, 0x00ff00ff")
        A(f"s_mov_b32 s{self.sM32+1}, 0x00ff00ff")
        A(f"s_mov_b32 s{self.sLog2e}, {f32(LOG2E)}")
        A(f"v_mov_b32 v{self.vQn}, 0x7fc00000")
        A(f"v_mov_b32 v{self.vZ}, 0")
        A(f"v_lshrrev_b32 v{vT[0]}, 5, v0")
        A(f"v_lshlrev_b32 v{self.vOut}, 8, v{vT[0]}")
        A(f"v_lshl_add_u32 v{self.vOut}, v{self.vC16}, 1, v{self.vOut}")
        A(f"v_bfe_u32 v{vT[0]}, v0, 4, 1")
        A(f"v_lshl_add_u32 v{self.vOut}, v{vT[0]}, 4, v{self.vOut}")

    def aux_consts2(self):
        A = self.A
        vT = self.vT
        A(f"v_bfe_u32 v{vT[0]}, v0, 3, 1")
        A(f"v_lshlrev_b32 v{self.vAct}, 4, v{vT[0]}")
        A(f"v_lshrrev_b32 v{vT[0]}, 4, v0")
        A(f"v_lshl_add_u32 v{self.vAct}, v{vT[0]}, 2, v{self.vAct}")
        A(f"v_and_b32 v{vT[0]}, 1, v0")
        A(f"v_cmp_eq_u32 vcc, 1, v{vT[0]}")
        A(f"v_mov_b32 v{vT[1]}, 0x01000c0c")
        A(f"v_mov_b32 v{vT[2]}, 0x0c0c0100")
        A(f"v_cndmask_b32 v{vT[1]}, v{vT[2]}, v{vT[1]}, vcc")
        A(f"v_mov_b32 v{vT[3]}, 0x03020c0c")
        A(f"v_mov_b32 v{vT[2]}, 0x0c0c0302")
        A(f"v_cndmask_b32 v{vT[3]}, v{vT[2]}, v{vT[3]}, vcc")
        A(f"v_mov_b32 v{vT[2]}, 0x0c0c0c0c")
        A(f"v_bfe_u32 v{vT[0]}, v0, 1, 2")
        for i in range(4):
            A(f"v_cmp_eq_u32 vcc, {i}, v{vT[0]}")
            A(f"v_cndmask_b32 v{self.selE+i}, v{vT[2]}, v{vT[1]}, vcc")
            A(f"v_cndmask_b32 v{self.selO+i}, v{vT[2]}, v{vT[3]}, vcc")

    def div9(self, q, r, t):
        A = self.A
        A(f"s_mul_i32 s{q}, s{t}, 57")
        A(f"s_lshr_b32 s{q}, s{q}, 9")
        A(f"s_mul_i32 s{r}, s{q}, 9")
        A(f"s_sub_u32 s{r}, s{t}, s{r}")

    def wait_lds_done(self):
        self.wait_lds(L_CNT, 4)

    def wait_lds(self, off, val, sleep=1):
        A = self.A
        vT = self.vT
        top, done = self.label("ld"), self.label("ldd")
        A(f"s_mov_b32 s{self.sTm}, {self.timeout*8}")
        A(f"{top}:")
        A(f"ds_read_b32 v{vT[0]}, v{self.vZ} offset:{off}")
        A("s_waitcnt lgkmcnt(0)")
        A(f"v_cmp_ne_u32 vcc, {val}, v{vT[0]}")
        A(f"s_cbranch_vccz {done}")
        A(f"s_sleep {sleep}")
        A(f"s_sub_u32 s{self.sTm}, s{self.sTm}, 1")
        A(f"s_cmp_lg_u32 s{self.sTm}, 0")
        A(f"s_cbranch_scc1 {top}")
        A(f"{done}:")

    def auxq(self):
        A = self.A
        vT, U, C = self.vT, self.U, self.C
        vL16, vZ, vQn, vAct = self.vL16, self.vZ, self.vQn, self.vAct
        sW, sX, sDbg, sT0, sT1, sT2, sT3, sTm = self.sW, self.sX, self.sDbg, self.sT0, self.sT1, self.sT2, self.sT3, self.sTm
        sBase, sLog2e = self.sBase, self.sLog2e
        R = self.R()
        G = U
        self.aux_vgprs = 256
        A("L_auxq:")
        A("s_setprio 3")
        if self.report:
            A("s_memrealtime s[88:89]")
        self.stamp(0, 40, vT[0], 95)
        sE = 82
        A(f"s_load_dwordx2 s[{sE}:{sE+1}], s[38:39], {EPOCH_OFF}")
        self.srd(sX, 16, 2304)
        self.srd(sW, 22, 576 * 4096 * 2)
        A(f"v_lshlrev_b32 v{vL16}, 4, v0")
        for k in (4, 5, 6, 7, 12, 13, 14, 15):
            A(f"v_mov_b32 v{G+k}, 0")
        A(f"buffer_load_dwordx4 v[{G}:{G+3}], v{vL16}, s[{sX}:{sX+3}], 0 offen")
        A(f"buffer_load_dwordx4 v[{G+8}:{G+11}], v{vL16}, s[{sX}:{sX+3}], 0 offen offset:1152")
        A("s_mov_b64 exec, 0xff")
        A(f"buffer_load_dwordx4 v[{G+4}:{G+7}], v{vL16}, s[{sX}:{sX+3}], 0 offen offset:1024")
        A(f"buffer_load_dwordx4 v[{G+12}:{G+15}], v{vL16}, s[{sX}:{sX+3}], 0 offen offset:2176")
        A("s_mov_b64 exec, -1")
        self.aux_consts()
        A(f"v_lshl_add_u32 v{self.vWoff}, v{self.vRow8}, 13, v{self.vC16}")
        A(f"s_and_b32 s{sT0}, s2, 3")
        A(f"s_lshr_b32 s{sT1}, s2, 2")
        A(f"s_mul_i32 s{sBase}, s{sT0}, {144*8192}")
        A(f"s_lshl_b32 s{sT1}, s{sT1}, 7")
        A(f"s_add_u32 s{sBase}, s{sBase}, s{sT1}")
        self.tile_loads(18, self.wreg, self.vWoff, sW, sBase, 8 * 8192, sT2)
        assert vT[1] % 2 == 0
        A(f"v_mov_b32 v{vT[1]}, 0")
        A(f"v_mov_b32 v{vT[2]}, 0")
        A("s_barrier")
        A(f"ds_write_b64 v{vZ}, v[{vT[1]}:{vT[2]}] offset:{L_CNT}")
        self.srd(sDbg, 36, 256)
        A(f"s_lshl_b32 s{self.sSlotQ}, s2, 10")
        A(f"s_add_u32 s{self.sSlotQ}, s{self.sSlotQ}, {QP_OFF}")
        self.aux_consts2()
        A("s_waitcnt vmcnt(18)")
        X = G + 16
        for b in range(2):
            for c in range(2):
                for k in range(4):
                    src = G + 8 * b + 4 * c + k
                    d = X + 16 * b + 8 * c + 2 * k
                    A(f"v_lshlrev_b32 v{d}, 16, v{src}")
                    A(f"v_and_b32 v{d+1}, 0xffff0000, v{src}")
        A(f"v_cmp_gt_u32 s[{sT0}:{sT1}], 8, v0")
        inv576 = f32(1.0 / 576.0)
        T = X + 32
        def regs(b):
            t = T + 8 * b
            return t, t + 1, t + 2, t + 3, t + 4, t + 5, t + 6
        for k in range(1, 16):
            for b in range(2):
                s = regs(b)[0]; x = X + 16 * b
                if k == 1:
                    A(f"v_add_f32 v{s}, v{x}, v{x+1}")
                else:
                    A(f"v_add_f32 v{s}, v{s}, v{x+k}")
        self.allreduce2(regs(0)[0], regs(0)[1], regs(1)[0], regs(1)[1])
        for b in range(2):
            s, t, mean, meanb, den, rcp, tmp = regs(b)
            A(f"v_mul_f32 v{mean}, {inv576}, v{s}")
            A(f"v_mov_b32 v{s}, 0")
        for k in range(16):
            for b in range(2):
                s, t, mean, meanb, den, rcp, tmp = regs(b); x = X + 16 * b
                A(f"v_sub_f32 v{tmp}, v{x+k}, v{mean}")
                if k >= 8:
                    A(f"v_cndmask_b32 v{tmp}, v{vZ}, v{tmp}, s[{sT0}:{sT1}]")
                A(f"v_fmac_f32 v{s}, v{tmp}, v{tmp}")
        self.allreduce2(regs(0)[0], regs(0)[1], regs(1)[0], regs(1)[1])
        for b in range(2):
            s, t, mean, meanb, den, rcp, tmp = regs(b)
            A(f"v_mul_f32 v{den}, {inv576}, v{s}")
            self.bf16r(den, den)
            A(f"v_add_f32 v{den}, {f32(1e-5)}, v{den}")
            self.bf16r(den, den)
            A(f"v_sqrt_f32 v{den}, v{den}")
            self.bf16r(meanb, mean)
            self.bf16r(den, den)
            A(f"v_rcp_f32 v{rcp}, v{den}")
        for k in range(0, 16, 2):
            for b in range(2):
                s, t, mean, meanb, den, rcp, tmp = regs(b); x = X + 16 * b
                a, c = x + k, x + k + 1
                A(f"v_sub_f32 v{a}, v{a}, v{meanb}")
                A(f"v_sub_f32 v{c}, v{c}, v{meanb}")
                A(f"v_cvt_pk_bf16_f32 v{tmp}, v{a}, v{c}")
                A(f"v_lshlrev_b32 v{a}, 16, v{tmp}")
                A(f"v_and_b32 v{c}, 0xffff0000, v{tmp}")
                for e in (a, c):
                    A(f"v_mul_f32 v{s}, v{e}, v{rcp}")
                    A(f"v_fma_f32 v{t}, -v{s}, v{den}, v{e}")
                    A(f"v_fma_f32 v{e}, v{t}, v{rcp}, v{s}")
                A(f"v_cvt_pk_bf16_f32 v{G+8*b+k//2}, v{a}, v{c}")
        A(f"v_lshlrev_b32 v{vT[0]}, 5, v0")
        A(f"ds_write_b128 v{vT[0]}, v[{G}:{G+3}] offset:{L_ACTX}")
        A(f"ds_write_b128 v{vT[0]}, v[{G+8}:{G+11}] offset:{L_ACTX+16}")
        A("s_mov_b64 exec, 0xff")
        A(f"ds_write_b128 v{vT[0]}, v[{G+4}:{G+7}] offset:{L_ACTX+2048}")
        A(f"ds_write_b128 v{vT[0]}, v[{G+12}:{G+15}] offset:{L_ACTX+2048+16}")
        A("s_mov_b64 exec, -1")
        A(f"s_and_b32 s{sT0}, s2, 3")
        A(f"s_mul_i32 s{sT0}, s{sT0}, {18*32}")
        A(f"v_add_u32 v{vT[6]}, s{sT0}, v{vAct}")
        A("s_waitcnt vmcnt(0) lgkmcnt(0)")
        A(f"s_add_u32 s{sE}, s{sE}, 1")
        A(f"s_add_u32 s{sE+1}, s{sE+1}, 0x9e3779b9")
        self.stamp(1, 40, vT[0], 95)
        self.gemv(18, self.wreg, L_ACTX, dict(R, act=vT[6]))
        De, Do = self.De, self.Do
        dm = "row_mask:0xf bank_mask:0xf"
        for rr in range(4):
            A(f"v_add_f32_dpp v{De+rr}, v{Do+rr}, v{De+rr} row_ror:8 {dm}")
        A(f"v_mov_b32 v{Do}, v{De+2}")
        A(f"v_mov_b32 v{Do+1}, v{De+3}")
        for d in (De, Do):
            A(f"v_mov_b32 v{d+2}, s{sE}")
            A(f"v_mov_b32 v{d+3}, s{sE+1}")
        A(f"v_lshlrev_b32 v{vT[0]}, 1, v{self.vOut}")
        A(f"s_mov_b64 exec, s[{self.sM32}:{self.sM32+1}]")
        A(f"buffer_store_dwordx4 v[{De}:{De+3}], v{vT[0]}, s[40:43], s{self.sSlotQ} offen sc1")
        A(f"buffer_store_dwordx4 v[{Do}:{Do+3}], v{vT[0]}, s[40:43], s{self.sSlotQ} offen offset:16 sc1")
        A("s_mov_b64 exec, -1")
        self.stamp(2, 40, vT[1], 95)
        A(f"s_lshr_b32 s{sT0}, s2, 3")
        A(f"s_lshr_b32 s{sT1}, s{sT0}, 4")
        A(f"s_and_b32 s{sT0}, s{sT0}, 15")
        A(f"s_lshl_b32 s{sT0}, s{sT0}, 14")
        A(f"s_lshl_b32 s{sT1}, s{sT1}, 9")
        A(f"s_add_u32 s{sT0}, s{sT0}, s{sT1}")
        A(f"s_add_u32 s{sT0}, s{sT0}, {QP_OFF}")
        A(f"v_lshrrev_b32 v{vT[0]}, 4, v0")
        A(f"v_lshlrev_b32 v{vT[0]}, 12, v{vT[0]}")
        A(f"v_and_b32 v{vT[1]}, 15, v0")
        A(f"v_lshl_add_u32 v{vT[5]}, v{vT[1]}, 5, v{vT[0]}")
        Q = self.P
        top, done = self.label("qp"), self.label("qpd")
        A(f"s_mov_b32 s{sTm}, {self.timeout}")
        A(f"{top}:")
        for k in range(8):
            A(f"buffer_load_dwordx4 v[{Q+4*k}:{Q+4*k+3}], v{vT[5]}, s[40:43], s{sT0} offen offset:{1024*(k//2)+16*(k%2)} sc1")
        A(f"v_mov_b32 v{vT[0]}, 0")
        for k in range(8):
            A(f"s_waitcnt vmcnt({7-k})")
            A(f"v_xor_b32 v{vT[1]}, s{sE}, v{Q+4*k+2}")
            A(f"v_xor_b32 v{vT[2]}, s{sE+1}, v{Q+4*k+3}")
            A(f"v_or3_b32 v{vT[0]}, v{vT[0]}, v{vT[1]}, v{vT[2]}")
        A(f"v_cmp_ne_u32 vcc, 0, v{vT[0]}")
        A(f"s_cbranch_vccz {done}")
        A("s_sleep 1")
        A(f"s_sub_u32 s{sTm}, s{sTm}, 1")
        A(f"s_cmp_lg_u32 s{sTm}, 0")
        A(f"s_cbranch_scc1 {top}")
        A(f"{done}:")
        for rr in range(4):
            for e in range(4):
                A(f"v_mov_b32 v{G+4*rr+e}, v{Q+8*rr+4*(e//2)+(e%2)}")
        for k in range(4):
            A(f"v_add_f32 v{G+k}, v{G+k}, v{G+4+k}")
            A(f"v_add_f32 v{G+8+k}, v{G+8+k}, v{G+12+k}")
        for k in range(4):
            A(f"v_add_f32 v{G+k}, v{G+k}, v{G+8+k}")
        A(f"v_cvt_pk_bf16_f32 v{G+4}, v{G}, v{G+1}")
        A(f"v_cvt_pk_bf16_f32 v{G+5}, v{G+2}, v{G+3}")
        A(f"v_lshlrev_b32 v{vT[0]}, 3, v0")
        A(f"ds_write_b64 v{vT[0]}, v[{G+4}:{G+5}] offset:{L_QL}")
        A("s_waitcnt lgkmcnt(0)")
        A("s_barrier")
        self.stamp(4, 40, vT[0], 95)
        self.wait_lds(L_GO, 1, sleep=8)
        self.stamp(3, 40, vT[0], 95)
        FB = self.Wb
        sFin, sFinX = self.sFin, self.sFinX
        skipf = self.label("nofin1")
        A(f"s_and_b32 s{sT0}, s2, 7")
        A(f"s_cmp_eq_u32 s{sT0}, 7")
        A(f"s_cselect_b32 s{self.sHasO}, 1, 0")
        A(f"s_cmp_lt_u32 s2, 72")
        A(f"s_cselect_b32 s{self.sHasO}, s{self.sHasO}, 0")
        A(f"s_cmp_eq_u32 s{self.sHasO}, 0")
        A(f"s_cbranch_scc1 {skipf}")
        A(f"s_lshr_b32 s{sT0}, s2, 3")
        A(f"s_lshl_b32 s{sFinX}, s{sT0}, 7")
        A(f"s_mul_i32 s{sT0}, s{sT0}, {34*512}")
        A(f"s_add_u32 s{sFin}, s{sT0}, {OP_OFF}")
        A(f"s_add_u32 s{sT1}, s{sFin}, {16*512}")
        A(f"s_add_u32 s{sT2}, s{sFin}, {16*512+4096}")
        A(f"s_add_u32 s{sT3}, s{sFin}, {16*512+8192}")

        def issue_ffn():
            for k in range(9):
                sb = (sT1, sT2, sT3)[k // 4]
                A(f"buffer_load_dwordx4 v[{FB+4*k}:{FB+4*k+3}], v{vL16}, s[40:43], s{sb} offen offset:{(k%4)*1024} sc1")
        self.poll(issue_ffn, range(FB, FB + 36), vT[0], sTm, sleep=32)
        for k in range(1, 9):
            for e in range(4):
                A(f"v_add_f32 v{FB+e}, v{FB+e}, v{FB+4*k+e}")
        for e in range(4):
            A(f"v_mov_b32 v{vT[0]}, v{FB+e}")
            A(f"v_permlane32_swap_b32 v{vT[0]}, v{FB+e}")
            A(f"v_add_f32 v{FB+e}, v{FB+e}, v{vT[0]}")
            self.bf16r(FB + e, FB + e)
        A(f"v_bfe_u32 v{vT[0]}, v0, 4, 1")
        A(f"v_mul_u32_u24 v{vT[0]}, 1152, v{vT[0]}")
        A(f"v_and_b32 v{vT[1]}, 15, v0")
        A(f"v_lshl_add_u32 v{FB+8}, v{vT[1]}, 3, v{vT[0]}")
        A(f"buffer_load_dwordx2 v[{FB+10}:{FB+11}], v{FB+8}, s[{sX}:{sX+3}], s{sFinX} offen")
        A("s_waitcnt vmcnt(0)")
        A(f"v_lshlrev_b32 v{FB+4}, 16, v{FB+10}")
        A(f"v_and_b32 v{FB+5}, 0xffff0000, v{FB+10}")
        A(f"v_lshlrev_b32 v{FB+6}, 16, v{FB+11}")
        A(f"v_and_b32 v{FB+7}, 0xffff0000, v{FB+11}")
        self.stamp(5, 40, vT[0], 95)
        A(f"{skipf}:")
        A(f"v_lshrrev_b32 v{vT[1]}, 5, v0")
        A(f"v_lshlrev_b32 v{vT[6]}, 3, v{vT[1]}")
        A(f"s_lshl_b32 s{sT0}, s2, 10")
        A(f"s_add_u32 s{sT0}, s{sT0}, {AP_OFF}")
        A(f"s_lshl_b32 s{sT1}, s2, 4")
        A(f"s_add_u32 s{sT1}, s{sT1}, {APH_OFF}")
        self.wait_lds_done()
        if self.report:
            A("s_memrealtime s[90:91]")
        self.stamp(6, 40, vT[0], 95)
        for w in range(4):
            A(f"ds_read_b64 v[{G+16+2*w}:{G+17+2*w}], v{vT[6]} offset:{L_WH+16*w}")
        for w in range(4):
            A(f"ds_read_b128 v[{G+4*w}:{G+4*w+3}], v{vL16} offset:{L_WP+1024*w}")
        A("s_waitcnt lgkmcnt(0)")
        M, Lr, Oc = C, C + 1, C + 4
        self.combine(4, lambda w: G + 4 * w, lambda w: G + 16 + 2 * w, M, Lr, Oc, vT, sLog2e)
        self.sanitize([Oc, Oc + 1, Oc + 2, Oc + 3, M, Lr], vQn)
        A(f"buffer_store_dwordx4 v[{Oc}:{Oc+3}], v{vL16}, s[40:43], s{sT0} offen sc1")
        A("s_mov_b32 exec_lo, 1")
        A("s_mov_b32 exec_hi, 1")
        A(f"buffer_store_dwordx2 v[{M}:{Lr}], v{vT[6]}, s[40:43], s{sT1} offen sc1")
        A("s_mov_b64 exec, -1")
        self.stamp(7, 40, vT[0], 95)
        A(f"s_cmp_eq_u32 s{self.sHasO}, 0")
        A("s_cbranch_scc1 L_end")
        A(f"s_add_u32 s{sT1}, s{sFin}, 4096")
        FA = FB + 12
        self.srd(sX, 34, 2304)

        def issue_fin():
            for k in range(8):
                sb = f"s{sFin}" if k < 4 else f"s{sT1}"
                A(f"buffer_load_dwordx4 v[{FA+4*k}:{FA+4*k+3}], v{vL16}, s[40:43], {sb} offen offset:{(k%4)*1024} sc1")
        self.poll(issue_fin, range(FA, FA + 32), vT[0], sTm, sleep=1)
        for k in (1, 3, 5, 7):
            for e in range(4):
                A(f"v_add_f32 v{FA+4*(k-1)+e}, v{FA+4*(k-1)+e}, v{FA+4*k+e}")
        for k in (2, 6):
            for e in range(4):
                A(f"v_add_f32 v{FA+4*(k-2)+e}, v{FA+4*(k-2)+e}, v{FA+4*k+e}")
        for e in range(4):
            A(f"v_add_f32 v{FA+e}, v{FA+e}, v{FA+16+e}")
        for e in range(4):
            A(f"v_mov_b32 v{FA+4+e}, v{FA+e}")
        for e in range(4):
            A(f"v_permlane32_swap_b32 v{FA+4+e}, v{FA+e}")
        for e in range(4):
            A(f"v_add_f32 v{FA+e}, v{FA+e}, v{FA+4+e}")
        for e in range(4):
            self.bf16r(FA + e, FA + e)
            A(f"v_add_f32 v{FA+e}, v{FB+4+e}, v{FA+e}")
            self.bf16r(FA + e, FA + e)
            A(f"v_add_f32 v{FA+e}, v{FA+e}, v{FB+e}")
        A(f"v_cvt_pk_bf16_f32 v{FA+4}, v{FA}, v{FA+1}")
        A(f"v_cvt_pk_bf16_f32 v{FA+5}, v{FA+2}, v{FA+3}")
        A("s_mov_b32 exec_hi, 0")
        A(f"buffer_store_dwordx2 v[{FA+4}:{FA+5}], v{FB+8}, s[{sX}:{sX+3}], s{sFinX} offen")
        A("s_mov_b64 exec, -1")
        self.stamp(10, 40, vT[0], 95)
        A("s_cmp_lg_u32 s2, 7")
        A("s_cbranch_scc1 L_end")
        if self.report:
            A("s_memrealtime s[92:93]")
            A("s_waitcnt lgkmcnt(0)")
            A("s_sub_u32 s92, s92, s88")
            A("s_sub_u32 s90, s90, s88")
            A(f"v_mov_b32 v{vT[1]}, s92")
            A(f"v_mov_b32 v{vT[2]}, s90")
            A("s_mov_b64 exec, 1")
            A(f"buffer_store_dwordx2 v[{vT[1]}:{vT[2]}], v{vZ}, s[{sDbg}:{sDbg+3}], 0 offen offset:8")
            A("s_mov_b64 exec, -1")
        A(f"v_mov_b32 v{vT[1]}, s{sE}")
        A(f"v_mov_b32 v{vT[2]}, s{sE+1}")
        A(f"s_mov_b32 s{sT0}, {EPOCH_OFF}")
        A("s_mov_b64 exec, 1")
        A(f"buffer_store_dwordx2 v[{vT[1]}:{vT[2]}], v{vZ}, s[40:43], s{sT0} offen")
        A("s_endpgm")

    def allreduce2(self, v0, t0, v1, t1):
        A = self.A
        dm = "row_mask:0xf bank_mask:0xf"
        for pat in ("quad_perm:[1,0,3,2]", "quad_perm:[2,3,0,1]", "row_half_mirror", "row_mirror"):
            for v in (v0, v1):
                A(f"v_add_f32_dpp v{v}, v{v}, v{v} {pat} {dm}")
        for sw in ("v_permlane16_swap_b32", "v_permlane32_swap_b32"):
            for v, t in ((v0, t0), (v1, t1)):
                A(f"v_mov_b32 v{t}, v{v}")
            for v, t in ((v0, t0), (v1, t1)):
                A(f"{sw} v{t}, v{v}")
            for v, t in ((v0, t0), (v1, t1)):
                A(f"v_add_f32 v{v}, v{v}, v{t}")

    def gu_setup(self):
        A = self.A
        sW, sT0, sT1, sBase, sU = self.sW, self.sT0, self.sT1, self.sBase, self.sU
        A(f"s_cmp_lt_u32 s{sU}, 144")
        A(f"s_cselect_b32 s{sW}, s28, s30")
        A(f"s_cselect_b32 s{sW+1}, s29, s31")
        A(f"s_cselect_b32 s{sT0}, 0, 144")
        A(f"s_and_b32 s{sW+1}, s{sW+1}, 0xffff")
        A(f"s_mov_b32 s{sW+2}, {576*4608*2}")
        A(f"s_mov_b32 s{sW+3}, 0x20000")
        A(f"s_sub_u32 s{sT0}, s{sU}, s{sT0}")
        A(f"s_and_b32 s{sT1}, s{sT0}, 1")
        A(f"s_lshr_b32 s{sT0}, s{sT0}, 1")
        A(f"s_lshl_b32 s{sBase}, s{sT0}, 7")
        A(f"s_mul_i32 s{sT0}, s{sT1}, {288*9216}")
        A(f"s_add_u32 s{sBase}, s{sBase}, s{sT0}")
        A(f"s_mul_i32 s{sT1}, s{sT1}, {36*32}")
        A(f"v_add_u32 v{self.vT[6]}, s{sT1}, v{self.vAct}")

    def auxf(self):
        A = self.A
        vT, U, C = self.vT, self.U, self.C
        vL16, vZ, vQn, vOut, vWoff = self.vL16, self.vZ, self.vQn, self.vOut, self.vWoff
        sW, sDbg, sT0, sT1, sT2, sT3, sTm = self.sW, self.sDbg, self.sT0, self.sT1, self.sT2, self.sT3, self.sTm
        sBase, sLog2e, sGrp, sI, sU = self.sBase, self.sLog2e, self.sGrp, self.sI, self.sU
        sHasD, sHasO, sSlotD, sSlotO, sM32 = self.sHasD, self.sHasO, self.sSlotD, self.sSlotO, self.sM32
        De = self.De
        R = self.R()
        G = U
        A("L_auxf:")
        A("s_setprio 2")
        self.stamp(0, 40, vT[0], 95)
        lab = self.label("noclr")
        A(f"s_cmp_ge_u32 s2, {CLR_AGENTS}")
        A(f"s_cbranch_scc1 {lab}")
        A(f"v_lshlrev_b32 v{vL16}, 4, v0")
        for k in range(4):
            A(f"v_mov_b32 v{De+k}, -1")
        A(f"s_mul_i32 s{sT0}, s2, {CLR_KIB*1024}")
        for k in range(CLR_KIB):
            if k and k % 4 == 0:
                A(f"s_add_u32 s{sT0}, s{sT0}, 4096")
            A(f"buffer_store_dwordx4 v[{De}:{De+3}], v{vL16}, s[40:43], s{sT0} offen offset:{(k%4)*1024} sc1")
        A(f"{lab}:")
        A("s_barrier")
        self.aux_consts()
        self.srd(sDbg, 36, 256)
        A(f"s_lshr_b32 s{sGrp}, s2, 3")
        A(f"s_and_b32 s{sI}, s2, 7")
        A(f"s_mul_i32 s{sU}, s{sGrp}, 9")
        A(f"s_add_u32 s{sU}, s{sU}, s{sI}")
        A(f"s_lshl_b32 s{sT0}, s{sI}, 5")
        A(f"s_add_u32 s{sT0}, s{sT0}, s{sGrp}")
        A(f"s_cmp_lt_u32 s{sT0}, 144")
        A(f"s_cselect_b32 s{sHasO}, 1, 0")
        self.div9(self.sKvO, self.sCbO, sT0)
        A(f"s_mul_i32 s{sT1}, s{self.sCbO}, 34")
        A(f"s_add_u32 s{sT1}, s{sT1}, s{self.sKvO}")
        A(f"s_lshl_b32 s{sT1}, s{sT1}, 9")
        A(f"s_add_u32 s{sSlotO}, s{sT1}, {OP_OFF}")
        A(f"s_sub_u32 s{sT0}, 255, s{sT0}")
        A(f"s_cmp_lt_u32 s{sT0}, 162")
        A(f"s_cselect_b32 s{sHasD}, 1, 0")
        self.div9(self.sRbD, self.sCbD, sT0)
        A(f"s_mul_i32 s{sT1}, s{self.sCbD}, 34")
        A(f"s_add_u32 s{sT1}, s{sT1}, s{self.sRbD}")
        A(f"s_lshl_b32 s{sT1}, s{sT1}, 9")
        A(f"s_add_u32 s{sSlotD}, s{sT1}, {OP_OFF + 16*512}")
        self.aux_consts2()
        A(f"v_mul_u32_u24 v{vWoff}, 9216, v{self.vRow8}")
        A(f"v_add_u32 v{vWoff}, v{vWoff}, v{self.vC16}")
        self.gu_setup()
        lab = self.label("noagent")
        A(f"s_cmp_ge_u32 s2, {CLR_AGENTS}")
        A(f"s_cbranch_scc1 {lab}")
        A(f"v_mov_b32 v{vT[0]}, 1")
        A("s_waitcnt vmcnt(0)")
        A("s_mov_b64 exec, 1")
        A(f"buffer_atomic_add v{vT[0]}, v{vZ}, s[{sDbg}:{sDbg+3}], 0 offen sc0")
        A("s_waitcnt vmcnt(0)")
        A(f"v_cmp_eq_u32 vcc, {CLR_AGENTS-1}, v{vT[0]}")
        A("s_mov_b64 exec, -1")
        A(f"s_cbranch_vccz {lab}")
        A(f"v_mov_b32 v{vT[0]}, 1")
        A("s_mov_b64 exec, 1")
        A(f"buffer_store_dword v{vT[0]}, v{vZ}, s[{sDbg}:{sDbg+3}], 0 offen offset:128 sc1")
        A("s_mov_b64 exec, -1")
        A(f"{lab}:")
        self.stamp(1, 40, vT[0], 95)
        A("s_barrier")
        self.stamp(2, 40, vT[0], 95)
        self.tile_loads(36, self.wreg, vWoff, sW, sBase, 8 * 9216, sT2)
        top, done = self.label("hs"), self.label("hsd")
        A("s_mov_b64 exec, 1")
        A(f"s_mov_b32 s{sTm}, {self.timeout}")
        A(f"{top}:")
        A(f"buffer_load_dword v{vT[0]}, v{vZ}, s[{sDbg}:{sDbg+3}], 0 offen offset:128 sc1")
        A("s_waitcnt vmcnt(0)")
        A(f"v_cmp_ne_u32 vcc, 1, v{vT[0]}")
        A(f"s_cbranch_vccz {done}")
        A(f"s_sleep {self.hs_sleep}")
        A(f"s_sub_u32 s{sTm}, s{sTm}, 1")
        A(f"s_cmp_lg_u32 s{sTm}, 0")
        A(f"s_cbranch_scc1 {top}")
        A(f"{done}:")
        A(f"v_mov_b32 v{vT[0]}, 1")
        A(f"ds_write_b32 v{vZ}, v{vT[0]} offset:{L_GO}")
        A("s_mov_b64 exec, -1")
        A("L_gu:")
        A("s_waitcnt vmcnt(0)")
        self.gemv(36, self.wreg, L_ACTX, dict(R, act=vT[6]))
        A(f"s_lshl_b32 s{sT0}, s{sU}, 9")
        A(f"s_add_u32 s{sT0}, s{sT0}, {GU_OFF}")
        self.gemv_publish(R, sT0)
        A(f"s_cmp_lg_u32 s{sI}, 0")
        A("s_cbranch_scc1 L_gu_done")
        A(f"s_mov_b32 s{sI}, 8")
        A(f"s_add_u32 s{sU}, s{sU}, 8")
        self.gu_setup()
        self.tile_loads(36, self.wreg, vWoff, sW, sBase, 8 * 9216, sT2)
        A("s_branch L_gu")
        A("L_gu_done:")
        self.stamp(3, 40, vT[0], 95)
        A(f"v_mul_u32_u24 v{vWoff}, 1152, v{self.vRow8}")
        A(f"v_add_u32 v{vWoff}, v{vWoff}, v{self.vC16}")
        skip = self.label("nodown")
        A(f"s_cmp_eq_u32 s{sHasD}, 0")
        A(f"s_cbranch_scc1 {skip}")
        self.srd(sW, 32, 4608 * 576 * 2)
        A(f"s_mul_i32 s{sBase}, s{self.sRbD}, {256*1152}")
        A(f"s_lshl_b32 s{sT0}, s{self.sCbD}, 7")
        A(f"s_add_u32 s{sBase}, s{sBase}, s{sT0}")
        self.tile_loads(32, self.wreg, vWoff, sW, sBase, 8 * 1152, sT2)
        A(f"v_lshrrev_b32 v{vT[0]}, 4, v0")
        A(f"v_lshlrev_b32 v{vT[0]}, 10, v{vT[0]}")
        A(f"v_and_b32 v{vT[1]}, 15, v0")
        A(f"v_lshl_add_u32 v{vT[5]}, v{vT[1]}, 4, v{vT[0]}")
        A(f"s_lshl_b32 s{sT0}, s{self.sRbD}, 12")
        A(f"s_add_u32 s{sT0}, s{sT0}, {GU_OFF}")
        A(f"s_add_u32 s{sT1}, s{sT0}, {144*512}")

        def issue_gu():
            for hf in range(2):
                for b in range(2):
                    o = G + 16 * hf + 8 * b
                    A(f"buffer_load_dwordx4 v[{o}:{o+3}], v{vT[5]}, s[40:43], s{sT0} offen offset:{512*hf+256*b} sc1")
                    A(f"buffer_load_dwordx4 v[{o+4}:{o+7}], v{vT[5]}, s[40:43], s{sT1} offen offset:{512*hf+256*b} sc1")
        self.poll(issue_gu, range(G, G + 32), vT[0], sTm, sleep=8)
        for k in range(16):
            A(f"v_add_f32 v{G+k}, v{G+k}, v{G+16+k}")
        c1 = f32(0.044715)
        c2 = f32(-2.0 * 0.7978845608028654 * LOG2E)
        A(f"s_mov_b32 s{sT2}, {c1}")
        A(f"s_mov_b32 s{sT3}, {c2}")
        for b in range(2):
            for k in range(4):
                g, u = G + 8 * b + k, G + 8 * b + 4 + k
                t0, t1 = vT[0], vT[1]
                A(f"v_cvt_pk_bf16_f32 v{t0}, v{g}, v{u}")
                A(f"v_lshlrev_b32 v{g}, 16, v{t0}")
                A(f"v_and_b32 v{u}, 0xffff0000, v{t0}")
                A(f"v_mul_f32 v{t0}, v{g}, v{g}")
                A(f"v_mul_f32 v{t0}, v{t0}, v{g}")
                A(f"v_fma_f32 v{t0}, v{t0}, s{sT2}, v{g}")
                A(f"v_mul_f32 v{t0}, s{sT3}, v{t0}")
                A(f"v_exp_f32 v{t0}, v{t0}")
                A(f"v_add_f32 v{t0}, 1.0, v{t0}")
                A(f"v_rcp_f32 v{t1}, v{t0}")
                A(f"v_mul_f32 v{g}, v{g}, v{t1}")
                self.bf16r(g, g)
                A(f"v_mul_f32 v{g}, v{g}, v{u}")
            A(f"v_cvt_pk_bf16_f32 v{C+2*b}, v{G+8*b}, v{G+8*b+1}")
            A(f"v_cvt_pk_bf16_f32 v{C+2*b+1}, v{G+8*b+2}, v{G+8*b+3}")
        A(f"v_lshrrev_b32 v{vT[0]}, 1, v0")
        A(f"v_lshlrev_b32 v{vT[0]}, 5, v{vT[0]}")
        A(f"v_and_b32 v{vT[1]}, 1, v0")
        A(f"v_lshl_add_u32 v{vT[0]}, v{vT[1]}, 3, v{vT[0]}")
        A(f"ds_write_b64 v{vT[0]}, v[{C}:{C+1}] offset:{L_ACTT}")
        A(f"ds_write_b64 v{vT[0]}, v[{C+2}:{C+3}] offset:{L_ACTT+16}")
        A("s_waitcnt lgkmcnt(0)")
        self.gemv(32, self.wreg, L_ACTT, R)
        self.gemv_publish(R, sSlotD)
        A(f"{skip}:")
        self.stamp(5, 40, vT[0], 95)
        A(f"s_cmp_eq_u32 s{sHasO}, 0")
        A("s_cbranch_scc1 L_end")
        self.srd(sW, 24, 4096 * 576 * 2)
        A(f"s_mul_i32 s{sBase}, s{self.sKvO}, {256*1152}")
        A(f"s_lshl_b32 s{sT0}, s{self.sCbO}, 7")
        A(f"s_add_u32 s{sBase}, s{sBase}, s{sT0}")
        self.tile_loads(32, self.wreg, vWoff, sW, sBase, 8 * 1152, sT2)
        A(f"v_lshrrev_b32 v{vT[0]}, 5, v0")
        A(f"v_lshlrev_b32 v{vT[6]}, 3, v{vT[0]}")
        A(f"v_lshlrev_b32 v{vT[4]}, 9, v{vT[0]}")
        A(f"v_and_b32 v{vT[0]}, 15, v0")
        A(f"v_lshl_add_u32 v{vT[4]}, v{vT[0]}, 5, v{vT[4]}")
        A(f"v_bfe_u32 v{vT[0]}, v0, 4, 1")
        A(f"v_lshl_add_u32 v{vT[4]}, v{vT[0]}, 3, v{vT[4]}")
        sA = [82, 83, 84, 85]; sH = [86, 87]
        for b in range(2):
            A(f"s_lshl_b32 s{sT1}, s{self.sKvO}, 13")
            A(f"s_add_u32 s{sA[2*b]}, s{sT1}, {AP_OFF + b*16*8*1024}")
            A(f"s_add_u32 s{sA[2*b+1]}, s{sA[2*b]}, 4096")
            A(f"s_lshl_b32 s{sT1}, s{self.sKvO}, 7")
            A(f"s_add_u32 s{sH[b]}, s{sT1}, {APH_OFF + b*2048}")
        self.wait_lds_done()
        self.stamp(6, 40, vT[0], 95)

        def issue_o():
            for b in range(2):
                Gb = G + 48 * b
                for i in range(8):
                    A(f"buffer_load_dwordx2 v[{Gb+32+2*i}:{Gb+33+2*i}], v{vT[6]}, s[40:43], s{sH[b]} offen offset:{16*i} sc1")
            for b in range(2):
                Gb = G + 48 * b
                for i in range(8):
                    A(f"buffer_load_dwordx4 v[{Gb+4*i}:{Gb+4*i+3}], v{vL16}, s[40:43], s{sA[2*b+i//4]} offen offset:{(i%4)*1024} sc1")
        self.poll(issue_o, range(G, G + 96), vT[0], sTm, sleep=1)
        self.stamp(8, 40, vT[0], 95)
        for b in range(2):
            Gb = G + 48 * b
            M, Lr, Oc = C, C + 1, C + 4
            self.combine(8, lambda w: Gb + 4 * w, lambda w: Gb + 32 + 2 * w, M, Lr, Oc, vT, sLog2e)
            A(f"v_rcp_f32 v{vT[0]}, v{Lr}")
            for e in range(4):
                A(f"v_mul_f32 v{vT[1]}, v{Oc+e}, v{vT[0]}")
                A(f"v_fma_f32 v{vT[2]}, -v{vT[1]}, v{Lr}, v{Oc+e}")
                A(f"v_fma_f32 v{Oc+e}, v{vT[2]}, v{vT[0]}, v{vT[1]}")
            A(f"v_cvt_pk_bf16_f32 v{C+2}, v{Oc}, v{Oc+1}")
            A(f"v_cvt_pk_bf16_f32 v{C+3}, v{Oc+2}, v{Oc+3}")
            A(f"ds_write_b64 v{vT[4]}, v[{C+2}:{C+3}] offset:{L_ACTT+16*b}")
        A("s_waitcnt lgkmcnt(0)")
        self.gemv(32, self.wreg, L_ACTT, R)
        self.gemv_publish(R, sSlotO)
        self.stamp(9, 40, vT[0], 95)
        A("L_end:")
        A("s_endpgm")

    def combine(self, n, oreg, hreg, M, Lr, Oc, vT, sLog2e):
        A = self.A
        ms = [hreg(w) for w in range(n)]
        A(f"v_max3_f32 v{M}, v{ms[0]}, v{ms[1]}, v{ms[2]}")
        k = 3
        while k < n:
            if k + 1 < n:
                A(f"v_max3_f32 v{M}, v{M}, v{ms[k]}, v{ms[k+1]}")
                k += 2
            else:
                A(f"v_max_f32 v{M}, v{M}, v{ms[k]}")
                k += 1
        for w in range(n):
            A(f"v_sub_f32 v{ms[w]}, v{ms[w]}, v{M}")
            A(f"v_mul_f32 v{ms[w]}, s{sLog2e}, v{ms[w]}")
        for w in range(n):
            A(f"v_exp_f32 v{ms[w]}, v{ms[w]}")
        A(f"v_mul_f32 v{Lr}, v{ms[0]}, v{ms[0]+1}")
        for e in range(4):
            A(f"v_mul_f32 v{Oc+e}, v{ms[0]}, v{oreg(0)+e}")
        for w in range(1, n):
            A(f"v_fmac_f32 v{Lr}, v{ms[w]}, v{ms[w]+1}")
            for e in range(4):
                A(f"v_fmac_f32 v{Oc+e}, v{ms[w]}, v{oreg(w)+e}")

    def footer(self):
        nv = max(self.stream_vgprs, self.aux_vgprs)
        nv = max(nv, 176)
        self.A(f""".section .rodata,"a"
.p2align 6
.amdhsa_kernel {KNAME}
  .amdhsa_next_free_vgpr {nv}
  .amdhsa_next_free_sgpr 102
  .amdhsa_accum_offset {(nv+3)//4*4}
  .amdhsa_group_segment_fixed_size 0
  .amdhsa_kernarg_size 96
  .amdhsa_user_sgpr_count 2
  .amdhsa_user_sgpr_kernarg_segment_ptr 1
  .amdhsa_system_sgpr_workgroup_id_x 1
  .amdhsa_float_denorm_mode_32 3
.end_amdhsa_kernel""")

    def build(self):
        self.header()
        self.stream()
        self.auxq()
        self.auxf()
        self.footer()
        out, nops = hazard.run(self.L)
        return "\n".join(out) + "\n"


def gen(**kw):
    return Gen(**kw).build()


if __name__ == "__main__":
    kw = eval("dict(%s)" % (sys.argv[2] if len(sys.argv) > 2 else ""))
    open(sys.argv[1], "w").write(gen(**kw))
```

```python
import struct
import sys
import hazard

KNAME = "parallel_sum__gqa_block_cached__geglu_ffn__decode_kernel"

GU_OFF = 0x00000
AP_OFF = 0x24000
APH_OFF = 0x64000
OP_OFF = 0x65000
NSRC = 50
CNT_OFF = 0x9D400
CLR_AGENTS = 32
CLR_KIB = 22
assert OP_OFF + 9 * NSRC * 512 <= CNT_OFF and CNT_OFF + 65536 <= CLR_AGENTS * CLR_KIB * 1024
QP_OFF = 0xB0000
EPOCH_OFF = 0xF0000
TS_OFF = 0x100000
TR_OFF = 0x120000
WS_SIZE = 0x160000

L_ACTX = 0
L_QL = 2304
L_ACTF = 2816
L_ACTQ = 3840
L_WP = 4864
L_WH = 8960
L_FLG = 9024
L_DONE, L_GO, L_XN, L_QRDY, L_H, L_T, L_FIN, L_ANN = (L_FLG + 4 * i for i in range(8))
L_Q = 9056
LDS_BYTES = 9216


def f32(x):
    return "0x%08x" % struct.unpack("<I", struct.pack("<f", x))[0]


LOG2E = 1.4426950408889634
SCALE = 128 ** -0.5
DM = "row_mask:0xf bank_mask:0xf"


class Gen:
    def __init__(self, NS=22, CH=8, stamps=False, timeout=200000, stash=True, pace=8, report=False, trace=False,
                 srv_sleep=2, early_gu=True, low=2, ann=3):
        self.low, self.ann = low, ann
        self.L = []
        self.NS, self.CH, self.stamps, self.timeout = NS, CH, stamps, timeout
        self.stash, self.pace, self.report, self.trace = stash, pace, report, trace
        self.srv_sleep, self.early_gu = srv_sleep, early_gu
        self.uid = 0

    def A(self, s):
        self.L.append(s)

    def label(self, base):
        self.uid += 1
        return f"L_{base}_{self.uid}"

    def srd(self, d, lo, size):
        A = self.A
        A(f"s_mov_b32 s{d}, s{lo}")
        A(f"s_and_b32 s{d+1}, s{lo+1}, 0xffff")
        A(f"s_mov_b32 s{d+2}, {size}")
        A(f"s_mov_b32 s{d+3}, 0x20000")

    def stamp(self, idx, vtmp):
        if not self.stamps:
            return
        A = self.A
        A("s_memrealtime s[96:97]")
        A("s_waitcnt lgkmcnt(0)")
        A(f"v_mov_b32 v{vtmp}, s96")
        A(f"v_mov_b32 v{vtmp+1}, 0")
        A("s_mov_b64 s[98:99], exec")
        A("s_mov_b64 exec, 1")
        A(f"buffer_store_dword v{vtmp}, v{vtmp+1}, s[40:43], s95 offen offset:{idx*4}")
        A("s_mov_b64 exec, s[98:99]")

    def allreduce_rows(self, op, v, t):
        A = self.A
        A(f"v_mov_b32 v{t}, v{v}")
        A(f"v_permlane16_swap_b32 v{t}, v{v}")
        A(f"{op} v{v}, v{v}, v{t}")
        A(f"v_mov_b32 v{t}, v{v}")
        A(f"v_permlane32_swap_b32 v{t}, v{v}")
        A(f"{op} v{v}, v{v}, v{t}")

    def allreduce_half_add(self, v, t):
        A = self.A
        for pat in ("quad_perm:[1,0,3,2]", "quad_perm:[2,3,0,1]", "row_half_mirror", "row_mirror"):
            A(f"v_add_f32_dpp v{v}, v{v}, v{v} {pat} {DM}")
        A(f"v_mov_b32 v{t}, v{v}")
        A(f"v_permlane16_swap_b32 v{t}, v{v}")
        A(f"v_add_f32 v{v}, v{v}, v{t}")

    def bf16r(self, d, s):
        self.A(f"v_cvt_pk_bf16_f32 v{d}, v{s}, v{s}")
        self.A(f"v_lshlrev_b32 v{d}, 16, v{d}")

    def sanitize(self, regs):
        for r in regs:
            self.A(f"v_min_u32 v{r}, -2, v{r}")

    def any_sentinel(self, regs, t):
        A = self.A
        regs = list(regs)
        A(f"v_max3_u32 v{t}, v{regs[0]}, v{regs[1]}, v{regs[2]}")
        rest = regs[3:]
        while rest:
            if len(rest) >= 2:
                A(f"v_max3_u32 v{t}, v{t}, v{rest[0]}, v{rest[1]}")
                rest = rest[2:]
            else:
                A(f"v_max_u32 v{t}, v{t}, v{rest[0]}")
                rest = rest[1:]
        A(f"v_cmp_eq_u32 vcc, -1, v{t}")

    def spin_tail(self, top, stmo, sleep):
        A = self.A
        A(f"s_sleep {sleep}")
        A(f"s_sub_u32 s{stmo}, s{stmo}, 1")
        A(f"s_cmp_lg_u32 s{stmo}, 0")
        A(f"s_cbranch_scc1 {top}")

    def poll(self, issue, check_regs, t, stmo, sleep):
        A = self.A
        top, done = self.label("poll"), self.label("polld")
        A(f"s_mov_b32 s{stmo}, {self.timeout}")
        A(f"{top}:")
        issue()
        A("s_waitcnt vmcnt(0)")
        self.any_sentinel(check_regs, t)
        A(f"s_cbranch_vccz {done}")
        self.spin_tail(top, stmo, sleep)
        A(f"{done}:")

    def wait_lds(self, off, val, vt, vz, stmo, sleep=1):
        A = self.A
        top, done = self.label("ld"), self.label("ldd")
        A(f"s_mov_b32 s{stmo}, {self.timeout*8}")
        A(f"{top}:")
        A(f"ds_read_b32 v{vt}, v{vz} offset:{off}")
        A("s_waitcnt lgkmcnt(0)")
        A(f"v_cmp_ne_u32 vcc, {val}, v{vt}")
        A(f"s_cbranch_vccz {done}")
        self.spin_tail(top, stmo, sleep)
        A(f"{done}:")

    def set_lds(self, off, vt, vz):
        A = self.A
        A(f"v_mov_b32 v{vt}, 1")
        A("s_waitcnt lgkmcnt(0)")
        A(f"ds_write_b32 v{vz}, v{vt} offset:{off}")

    def header(self):
        A = self.A
        A(f"; @launch grid=(256,1,1) block=(384,1,1) lds={LDS_BYTES}")
        A('.amdgcn_target "amdgcn-amd-amdhsa--gfx950"')
        A(".text")
        A(f".globl {KNAME}")
        A(".p2align 8")
        A(f".type {KNAME},@function")
        A(f"{KNAME}:")
        A("s_cmp_ge_u32 s2, 256")
        A("s_cbranch_scc1 L_end")
        A("s_load_dwordx16 s[16:31], s[0:1], 0")
        A("s_load_dwordx8 s[32:39], s[0:1], 64")
        A("v_lshrrev_b32 v1, 6, v0")
        A("v_readfirstlane_b32 s3, v1")
        A("v_and_b32 v0, 63, v0")
        A("s_waitcnt lgkmcnt(0)")
        self.srd(40, 38, WS_SIZE if (self.stamps or self.trace) else TS_OFF)
        if self.stamps:
            A("s_lshl_b32 s95, s2, 3")
            A("s_add_u32 s95, s95, s3")
            A("s_lshl_b32 s95, s95, 6")
            A(f"s_add_u32 s95, s95, {TS_OFF}")
        A("s_cmp_eq_u32 s3, 4")
        A("s_cbranch_scc1 L_auxq")
        A("s_cmp_eq_u32 s3, 5")
        A("s_cbranch_scc1 L_auxf")

    def stream(self):
        A = self.A
        CH, NS = self.CH, self.NS
        NCH = (8 << 20) // (CH * 1024)
        PERWG = NCH // 8
        CB = CH * 1024
        nblk = (CH + 3) // 4
        vKo = [2 + i for i in range(nblk)]
        vVo = [2 + nblk + i for i in range(nblk)]
        r = 2 + 2 * nblk
        vZ, vCl = r, r + 1
        r += 2
        vM, vL, vNML, vMx, vT0, vT1, vT2, vOne = range(r, r + 8)
        r += 8
        r = (r + 3) // 4 * 4
        vQ = r; r += 4
        vMask = r; r += 4
        vO = r; r += 4
        vA = [r, r + 4]; r += 8
        vS = r; r += CH
        r = (r + 3) // 4 * 4
        vD = r; r += 4 * CH
        vK = r; r += 4 * CH
        vV = r; r += 4 * CH
        vSK = r; vSV = r + 4 * CH
        if self.stash:
            r += 8 * CH
        self.stream_vgprs = r
        sK, sV = 44, 48
        sGb, sIdx, sCur, sNxt, sStep, sOff = 52, 53, 54, 55, 56, 57
        sT0, sT1, sT2 = 58, 59, 60
        sLog2e, sScale = 61, 62
        sHm = 64
        self.srd(sK, 18, 256 << 20)
        self.srd(sV, 20, 256 << 20)
        self.stamp(0, vT0)
        A(f"s_lshr_b32 s{sT0}, s2, 3")
        A(f"s_lshl_b32 s{sGb}, s{sT0}, 23")
        A(f"s_and_b32 s{sT0}, s2, 7")
        A(f"s_lshl_b32 s{sT0}, s{sT0}, 2")
        A(f"s_add_u32 s{sCur}, s{sT0}, s3")
        A(f"s_add_u32 s{sNxt}, s{sCur}, 32")
        A(f"s_mov_b32 s{sStep}, 0")
        A(f"v_bfe_u32 v{vT0}, v0, 2, 2")
        A(f"v_lshlrev_b32 v{vT0}, 8, v{vT0}")
        A(f"v_lshrrev_b32 v{vT1}, 4, v0")
        A(f"v_lshl_add_u32 v{vT0}, v{vT1}, 6, v{vT0}")
        A(f"v_and_b32 v{vT1}, 3, v0")
        A(f"v_lshl_add_u32 v{vT0}, v{vT1}, 4, v{vT0}")
        A(f"v_lshlrev_b32 v{vT1}, 4, v0")
        for i in range(nblk):
            A(f"v_add_u32 v{vKo[i]}, {4096*i}, v{vT0}")
            A(f"v_add_u32 v{vVo[i]}, {4096*i}, v{vT1}")

        def addr(sid):
            A(f"s_lshr_b32 s{sT0}, s{sid}, 5")
            A(f"s_and_b32 s{sT1}, s{sid}, 31")
            A(f"s_lshr_b32 s{sT2}, s{sT1}, 2")
            A(f"s_and_b32 s{sT1}, s{sT1}, 3")
            A(f"s_mul_i32 s{sT2}, s{sT2}, {PERWG}")
            A(f"s_lshl_b32 s{sT0}, s{sT0}, 2")
            A(f"s_add_u32 s{sT2}, s{sT2}, s{sT0}")
            A(f"s_add_u32 s{sT2}, s{sT2}, s{sT1}")
            A(f"s_mul_i32 s{sOff}, s{sT2}, {CB}")
            A(f"s_add_u32 s{sOff}, s{sOff}, s{sGb}")

        def ldK(i, base):
            A(f"buffer_load_dwordx4 v[{base+4*i}:{base+4*i+3}], v{vKo[i//4]}, s[{sK}:{sK+3}], s{sOff} offen offset:{(i%4)*1024} nt")

        def ldV(i, base):
            A(f"buffer_load_dwordx4 v[{base+4*i}:{base+4*i+3}], v{vVo[i//4]}, s[{sV}:{sV+3}], s{sOff} offen offset:{(i%4)*1024} nt")

        def consts():
            A(f"s_mov_b32 s{sLog2e}, {f32(LOG2E)}")
            A(f"s_mov_b32 s{sScale}, {f32(SCALE)}")
            A(f"s_mov_b32 s{sHm}, 0x00ff00ff")
            A(f"s_mov_b32 s{sHm+1}, 0xff00ff00")
            A(f"v_mov_b32 v{vZ}, 0")
            A(f"v_mov_b32 v{vOne}, 1")
            for i in range(4):
                A(f"v_mov_b32 v{vO+i}, 0")
            A(f"v_mov_b32 v{vM}, 0xff7fffff")
            A(f"v_mov_b32 v{vL}, 0")
            A(f"v_mov_b32 v{vNML}, 0")
            A(f"v_and_b32 v{vT0}, 1, v0")
            A(f"v_cmp_eq_u32 vcc, 1, v{vT0}")
            A(f"v_mov_b32 v{vT1}, 0xffff0000")
            A(f"v_mov_b32 v{vT2}, 0xffff")
            A(f"v_cndmask_b32 v{vT1}, v{vT2}, v{vT1}, vcc")
            A(f"v_bfe_u32 v{vT0}, v0, 1, 2")
            for i in range(4):
                A(f"v_cmp_eq_u32 vcc, {i}, v{vT0}")
                A(f"v_cndmask_b32 v{vMask+i}, v{vZ}, v{vT1}, vcc")
            A(f"v_bfe_u32 v{vMx}, v0, 3, 1")
            A(f"v_lshlrev_b32 v{vMx}, 8, v{vMx}")
            A(f"v_lshrrev_b32 v{vT1}, 4, v0")
            A(f"v_lshl_add_u32 v{vMx}, v{vT1}, 6, v{vMx}")
            A(f"v_and_b32 v{vT1}, 3, v0")
            A(f"v_lshl_add_u32 v{vMx}, v{vT1}, 4, v{vMx}")

        addr(sCur)
        A("s_barrier")
        seq = []
        if self.stash:
            seq += [("K", i, vSK) for i in range(CH)] + [("V", i, vSV) for i in range(CH)] + [("next",)]
        seq += [("K", i, vK) for i in range(CH)] + [("V", i, vV) for i in range(CH)]
        n_issued = 0
        consts_done = False
        for op in seq:
            if op[0] == "next":
                A(f"s_mov_b32 s{sCur}, s{sNxt}")
                A(f"s_add_u32 s{sNxt}, s{sNxt}, 32")
                A(f"s_mov_b32 s{sStep}, 1")
                addr(sCur)
                continue
            if n_issued >= self.pace:
                if not consts_done:
                    consts()
                    consts_done = True
                A(f"s_waitcnt vmcnt({self.pace-1})")
            (ldK if op[0] == "K" else ldV)(op[1], op[2])
            n_issued += 1
        if not consts_done:
            consts()
        self.stamp(3, vT1)
        self.wait_lds(L_QRDY, 1, vT0, vZ, sT0, sleep=1)
        A(f"ds_read_b128 v[{vQ}:{vQ+3}], v{vMx} offset:{L_QL}")
        self.stamp(1, vT1)
        A("s_waitcnt lgkmcnt(0)")
        W = 2 * CH - 1

        def body(kb, vb, refill, wK, wV):
            nores = self.label("norescale")
            for i in range(CH):
                A(f"s_waitcnt vmcnt({wK(i)})")
                A(f"v_mfma_f32_16x16x32_bf16 v[{vD+4*i}:{vD+4*i+3}], v[{kb+4*i}:{kb+4*i+3}], v[{vQ}:{vQ+3}], 0")
                if refill:
                    ldK(i, kb)
            for i in range(0, CH, 2):
                for k in (i, i + 1):
                    d = vD + 4 * k
                    A(f"v_mov_b32_dpp v{vS+k}, v{d} quad_perm:[0,0,0,0] {DM}")
                    A(f"v_add_f32_dpp v{vS+k}, v{d+1}, v{vS+k} quad_perm:[1,1,1,1] {DM}")
                    A(f"v_add_f32_dpp v{vS+k}, v{d+2}, v{vS+k} quad_perm:[2,2,2,2] {DM}")
                    A(f"v_add_f32_dpp v{vS+k}, v{d+3}, v{vS+k} quad_perm:[3,3,3,3] {DM}")
                a, b = vS + i, vS + i + 1
                A(f"v_cvt_pk_bf16_f32 v{vT0}, v{a}, v{b}")
                A(f"v_lshlrev_b32 v{a}, 16, v{vT0}")
                A(f"v_and_b32 v{b}, 0xffff0000, v{vT0}")
                A(f"v_mul_f32 v{a}, s{sScale}, v{a}")
                A(f"v_mul_f32 v{b}, s{sScale}, v{b}")
                A(f"v_cvt_pk_bf16_f32 v{vT0}, v{a}, v{b}")
                A(f"v_lshlrev_b32 v{a}, 16, v{vT0}")
                A(f"v_and_b32 v{b}, 0xffff0000, v{vT0}")
            A(f"v_max3_f32 v{vMx}, v{vS}, v{vS+1}, v{vS+2}")
            k = 3
            while k < CH:
                if k + 1 < CH:
                    A(f"v_max3_f32 v{vMx}, v{vMx}, v{vS+k}, v{vS+k+1}")
                    k += 2
                else:
                    A(f"v_max_f32 v{vMx}, v{vMx}, v{vS+k}")
                    k += 1
            A(f"v_cmp_gt_f32 vcc, v{vMx}, v{vM}")
            A(f"s_cbranch_vccz {nores}")
            self.allreduce_rows("v_max_f32", vMx, vT0)
            A(f"v_max_f32 v{vMx}, v{vMx}, v{vM}")
            A(f"v_sub_f32 v{vT0}, v{vM}, v{vMx}")
            A(f"v_mul_f32 v{vT0}, s{sLog2e}, v{vT0}")
            A(f"v_exp_f32 v{vT0}, v{vT0}")
            A(f"v_mov_b32 v{vM}, v{vMx}")
            A(f"v_mul_f32 v{vNML}, s{sLog2e}, v{vMx}")
            A(f"v_sub_f32 v{vNML}, 0, v{vNML}")
            A(f"v_mul_f32 v{vL}, v{vL}, v{vT0}")
            A(f"v_mov_b32_dpp v{vT1}, v{vT0} row_ror:8 {DM}")
            A(f"v_cndmask_b32 v{vT1}, v{vT1}, v{vT0}, s[{sHm}:{sHm+1}]")
            for i in range(4):
                A(f"v_mul_f32 v{vO+i}, v{vO+i}, v{vT1}")
            A(f"{nores}:")
            for i in range(CH):
                A(f"v_fma_f32 v{vS+i}, v{vS+i}, s{sLog2e}, v{vNML}")
            for i in range(CH):
                A(f"v_exp_f32 v{vS+i}, v{vS+i}")
            for i in range(CH):
                A(f"v_add_f32 v{vL}, v{vL}, v{vS+i}")
                A(f"v_cvt_pk_bf16_f32 v{vS+i}, v{vS+i}, v{vS+i}")

            def buildA(i):
                for rr in range(4):
                    A(f"v_and_b32 v{vA[i%2]+rr}, v{vMask+rr}, v{vS+i}")
            buildA(0)
            for i in range(CH):
                if i + 1 < CH:
                    buildA(i + 1)
                A(f"s_waitcnt vmcnt({wV(i)})")
                a = vA[i % 2]
                A(f"v_mfma_f32_16x16x32_bf16 v[{vO}:{vO+3}], v[{a}:{a+3}], v[{vb+4*i}:{vb+4*i+3}], v[{vO}:{vO+3}]")
                if refill:
                    ldV(i, vb)

        if self.stash:
            body(vSK, vSV, False, lambda i: 4 * CH - 1 - i, lambda i: 3 * CH - 1 - i)
        A("L_loop:")
        A(f"s_cmp_lg_u32 s{sStep}, {NS-self.ann}")
        A("s_cbranch_scc1 L_noclaim")
        A(f"ds_write_b32 v{vZ}, v{vOne} offset:{L_ANN}")
        A("L_noclaim:")
        addr(sNxt)
        A(f"s_cmp_lt_u32 s{sNxt}, {NCH}")
        A(f"s_cselect_b32 s{sOff}, s{sOff}, 0x80000000")
        body(vK, vV, True, lambda i: W, lambda i: W)
        A(f"s_mov_b32 s{sCur}, s{sNxt}")
        A(f"s_add_u32 s{sNxt}, s{sNxt}, 32")
        A(f"s_cmp_lt_u32 s{sStep}, {NS-2}")
        A("s_cbranch_scc1 L_static")
        A("s_mov_b64 exec, 1")
        A(f"ds_add_rtn_u32 v{vCl}, v{vZ}, v{vOne} offset:{L_H}")
        A("s_mov_b64 exec, -1")
        A("s_waitcnt lgkmcnt(0)")
        A(f"v_readfirstlane_b32 s{sIdx}, v{vCl}")
        A(f"s_and_b32 s{sT0}, s{sIdx}, 15")
        A(f"s_lshl_b32 s{sT0}, s{sT0}, 2")
        A(f"v_mov_b32 v{vT2}, s{sT0}")
        A(f"s_mov_b32 s{sT1}, {self.timeout*8}")
        A("L_idwait:")
        A(f"ds_read_b32 v{vT0}, v{vZ} offset:{L_T}")
        A(f"ds_read_b32 v{vT1}, v{vT2} offset:{L_Q}")
        A("s_waitcnt lgkmcnt(0)")
        A(f"v_readfirstlane_b32 s{sT0}, v{vT0}")
        A(f"v_readfirstlane_b32 s{sNxt}, v{vT1}")
        A(f"s_cmp_gt_u32 s{sT0}, s{sIdx}")
        A("s_cbranch_scc1 L_static")
        A(f"s_mov_b32 s{sNxt}, {NCH}")
        self.spin_tail("L_idwait", sT1, 1)
        A("L_static:")
        if self.trace:
            A("s_memrealtime s[96:97]")
            A("s_lshl_b32 s98, s2, 2")
            A("s_add_u32 s98, s98, s3")
            A("s_lshl_b32 s98, s98, 6")
            A(f"s_add_u32 s98, s98, s{sStep}")
            A("s_lshl_b32 s98, s98, 2")
            A(f"s_add_u32 s98, s98, {TR_OFF}")
            A("s_waitcnt lgkmcnt(0)")
            A(f"v_mov_b32 v{vT0}, s96")
            A("s_mov_b64 exec, 1")
            A(f"buffer_store_dword v{vT0}, v{vZ}, s[40:43], s98 offen")
            A("s_mov_b64 exec, -1")
        A(f"s_add_u32 s{sStep}, s{sStep}, 1")
        A(f"s_cmp_lt_u32 s{sCur}, {NCH}")
        A("s_cbranch_scc1 L_loop")
        self.stamp(2, vT1)
        self.allreduce_rows("v_add_f32", vL, vT0)
        A(f"s_lshl_b32 s{sT0}, s3, 10")
        A(f"v_lshlrev_b32 v{vT0}, 4, v0")
        A(f"v_add_u32 v{vT0}, s{sT0}, v{vT0}")
        A(f"ds_write_b128 v{vT0}, v[{vO}:{vO+3}] offset:{L_WP}")
        A(f"s_lshl_b32 s{sT0}, s3, 4")
        A(f"v_add_u32 v{vT0}, s{sT0}, v0")
        assert vL == vM + 1 and vM % 2 == 0, (vM, vL)
        A("s_mov_b64 exec, 0x101")
        A(f"ds_write_b64 v{vT0}, v[{vM}:{vL}] offset:{L_WH}")
        A("s_mov_b64 exec, 1")
        A("s_waitcnt lgkmcnt(0)")
        A(f"ds_add_u32 v{vZ}, v{vOne} offset:{L_DONE}")
        A("s_endpgm")

    vRow8, vC16, vWoff, vG4, vOut, vL16, vB, vZ = 1, 2, 3, 4, 5, 6, 7, 8
    vT = [9, 10, 11, 12, 13, 14, 15]
    selE, selO = 16, 20
    U = 24
    Aset, De, Do, P = 24, 40, 44, 48
    C = 120
    Wb = 128
    sW, sX, sDbg = 44, 48, 52
    sM32 = 56
    sT0, sT1, sT2, sT3, sTm = 58, 59, 60, 61, 62
    sSlotQ, sU, sSlotD, sSlotO, sBase = 65, 66, 67, 68, 69
    sLog2e = 70
    sFinal, sHasD, sHasO = 71, 72, 73
    sRbD, sCbD, sKvO, sCbO, sGrp, sI = 74, 75, 76, 77, 78, 79
    sFin, sFinX = 80, 81
    sE = 82
    sTq, sCnt, sExh = 84, 85, 86

    def wreg(self, j):
        return self.Wb + 4 * j if j < 32 else 84 + 4 * (j - 32)

    def gemv(self, J, vact, act_off, first=True):
        A = self.A
        vP, sE, sO, vAe, De, Do = self.P, self.selE, self.selO, self.Aset, self.De, self.Do
        for j in range(J):
            A(f"ds_read_b32 v{vP+j}, v{vact} offset:{act_off+16*j}")

        def perms(j):
            s = vAe + 8 * (j % 2)
            for rr in range(4):
                A(f"v_perm_b32 v{s+rr}, v{vP+j}, v{vP+j}, v{sE+rr}")
            for rr in range(4):
                A(f"v_perm_b32 v{s+4+rr}, v{vP+j}, v{vP+j}, v{sO+rr}")
        A(f"s_waitcnt lgkmcnt({min(J-1, 15)})")
        perms(0)
        for j in range(J):
            if j + 1 < J:
                if J - 2 - j <= 15:
                    A(f"s_waitcnt lgkmcnt({J-2-j})")
                elif j == 0:
                    A("s_waitcnt lgkmcnt(15)")
                perms(j + 1)
            s = vAe + 8 * (j % 2)
            w = self.wreg(j)
            ce = "0" if (first and j == 0) else f"v[{De}:{De+3}]"
            co = "0" if (first and j == 0) else f"v[{Do}:{Do+3}]"
            A(f"v_mfma_f32_16x16x32_bf16 v[{De}:{De+3}], v[{s}:{s+3}], v[{w}:{w+3}], {ce}")
            A(f"v_mfma_f32_16x16x32_bf16 v[{Do}:{Do+3}], v[{s+4}:{s+7}], v[{w}:{w+3}], {co}")

    def gemv_fold(self, dst):
        for rr in range(4):
            if dst != self.De:
                self.A(f"v_mov_b32 v{dst+rr}, v{self.De+rr}")
            self.A(f"v_add_f32_dpp v{dst+rr}, v{self.Do+rr}, v{dst+rr} row_ror:8 {DM}")

    def publish(self, src, soff):
        A = self.A
        self.sanitize(range(src, src + 4))
        A(f"s_mov_b64 exec, s[{self.sM32}:{self.sM32+1}]")
        A(f"buffer_store_dwordx4 v[{src}:{src+3}], v{self.vOut}, s[40:43], s{soff} offen sc1")
        A("s_mov_b64 exec, -1")

    def tile_loads(self, J, step):
        A = self.A
        for j in range(J):
            w = self.wreg(j)
            if j:
                A(f"s_add_u32 s{self.sBase}, s{self.sBase}, {step}")
            A(f"buffer_load_dwordx4 v[{w}:{w+3}], v{self.vWoff}, s[{self.sW}:{self.sW+3}], s{self.sBase} offen nt")

    def consts1(self):
        A = self.A
        A(f"v_lshrrev_b32 v{self.vRow8}, 3, v0")
        A(f"v_and_b32 v{self.vC16}, 7, v0")
        A(f"v_lshlrev_b32 v{self.vC16}, 4, v{self.vC16}")
        A(f"v_mov_b32 v{self.vZ}, 0")

    def consts2(self):
        A = self.A
        vT = self.vT
        A(f"v_lshlrev_b32 v{self.vL16}, 4, v0")
        A(f"s_mov_b32 s{self.sM32}, 0x00ff00ff")
        A(f"s_mov_b32 s{self.sM32+1}, 0x00ff00ff")
        A(f"s_mov_b32 s{self.sLog2e}, {f32(LOG2E)}")
        A(f"v_lshrrev_b32 v{vT[0]}, 5, v0")
        A(f"v_lshlrev_b32 v{self.vOut}, 8, v{vT[0]}")
        A(f"v_lshl_add_u32 v{self.vOut}, v{self.vC16}, 1, v{self.vOut}")
        A(f"v_bfe_u32 v{vT[0]}, v0, 4, 1")
        A(f"v_lshl_add_u32 v{self.vOut}, v{vT[0]}, 4, v{self.vOut}")
        A(f"v_bfe_u32 v{self.vB}, v0, 3, 1")
        A(f"v_lshrrev_b32 v{vT[0]}, 4, v0")
        A(f"v_lshlrev_b32 v{self.vG4}, 2, v{vT[0]}")
        A(f"v_and_b32 v{vT[0]}, 1, v0")
        A(f"v_cmp_eq_u32 vcc, 1, v{vT[0]}")
        A(f"v_mov_b32 v{vT[1]}, 0x01000c0c")
        A(f"v_mov_b32 v{vT[2]}, 0x0c0c0100")
        A(f"v_cndmask_b32 v{vT[1]}, v{vT[2]}, v{vT[1]}, vcc")
        A(f"v_mov_b32 v{vT[3]}, 0x03020c0c")
        A(f"v_mov_b32 v{vT[2]}, 0x0c0c0302")
        A(f"v_cndmask_b32 v{vT[3]}, v{vT[2]}, v{vT[3]}, vcc")
        A(f"v_mov_b32 v{vT[2]}, 0x0c0c0c0c")
        A(f"v_bfe_u32 v{vT[0]}, v0, 1, 2")
        for i in range(4):
            A(f"v_cmp_eq_u32 vcc, {i}, v{vT[0]}")
            A(f"v_cndmask_b32 v{self.selE+i}, v{vT[2]}, v{vT[1]}, vcc")
            A(f"v_cndmask_b32 v{self.selO+i}, v{vT[2]}, v{vT[3]}, vcc")

    def div9(self, q, r, t):
        A = self.A
        A(f"s_mul_i32 s{q}, s{t}, 57")
        A(f"s_lshr_b32 s{q}, s{q}, 9")
        A(f"s_mul_i32 s{r}, s{q}, 9")
        A(f"s_sub_u32 s{r}, s{t}, s{r}")

    def roles(self, half):
        A = self.A
        sT0, sT1 = self.sT0, self.sT1
        A(f"s_lshr_b32 s{self.sGrp}, s2, 3")
        A(f"s_and_b32 s{self.sI}, s2, 7")
        A(f"s_lshl_b32 s{sT0}, s{self.sI}, 5")
        A(f"s_add_u32 s{sT0}, s{sT0}, s{self.sGrp}")
        A(f"s_cmp_lt_u32 s{sT0}, 144")
        A(f"s_cselect_b32 s{self.sHasO}, 1, 0")
        self.div9(self.sKvO, self.sCbO, sT0)
        A(f"s_mul_i32 s{sT1}, s{self.sCbO}, {NSRC}")
        A(f"s_lshl_b32 s{self.sT2}, s{self.sKvO}, 1")
        A(f"s_add_u32 s{sT1}, s{sT1}, s{self.sT2}")
        A(f"s_lshl_b32 s{sT1}, s{sT1}, 9")
        A(f"s_add_u32 s{self.sSlotO}, s{sT1}, {OP_OFF + 512*half}")
        A(f"s_cmp_eq_u32 s{self.sI}, 7")
        A(f"s_cselect_b32 s{self.sFinal}, 1, 0")
        A(f"s_cmp_lt_u32 s2, 72")
        A(f"s_cselect_b32 s{self.sFinal}, s{self.sFinal}, 0")
        A(f"s_lshl_b32 s{self.sFinX}, s{self.sGrp}, 7")
        A(f"s_mul_i32 s{self.sFin}, s{self.sGrp}, {NSRC*512}")
        A(f"s_add_u32 s{self.sFin}, s{self.sFin}, {OP_OFF}")
        if half == 0:
            A(f"s_sub_u32 s{sT0}, 255, s{sT0}")
            A(f"s_cmp_lt_u32 s{sT0}, 162")
            A(f"s_cselect_b32 s{self.sHasD}, 1, 0")
            self.div9(self.sRbD, self.sCbD, sT0)
            A(f"s_mul_i32 s{sT1}, s{self.sCbD}, {NSRC}")
            A(f"s_add_u32 s{sT1}, s{sT1}, s{self.sRbD}")
            A(f"s_lshl_b32 s{sT1}, s{sT1}, 9")
            A(f"s_add_u32 s{self.sSlotD}, s{sT1}, {OP_OFF + 32*512}")

    def wo_loads(self, half):
        A = self.A
        self.srd(self.sW, 24, 4096 * 576 * 2)
        A(f"v_mul_u32_u24 v{self.vWoff}, 1152, v{self.vRow8}")
        A(f"v_add_u32 v{self.vWoff}, v{self.vWoff}, v{self.vC16}")
        A(f"s_mul_i32 s{self.sBase}, s{self.sKvO}, {256*1152}")
        A(f"s_lshl_b32 s{self.sT0}, s{self.sCbO}, 7")
        A(f"s_add_u32 s{self.sBase}, s{self.sBase}, s{self.sT0}")
        if half:
            A(f"s_add_u32 s{self.sBase}, s{self.sBase}, {128*1152}")
        self.tile_loads(16, 8 * 1152)

    def wo_prep(self, half):
        A = self.A
        vT = self.vT
        A(f"v_lshrrev_b32 v{vT[0]}, 5, v0")
        A(f"v_and_b32 v{vT[1]}, 31, v0")
        A(f"v_lshlrev_b32 v{vT[5]}, 17, v{vT[0]}")
        A(f"v_lshl_add_u32 v{vT[5]}, v{vT[1]}, 4, v{vT[5]}")
        A(f"v_lshlrev_b32 v{vT[6]}, 11, v{vT[0]}")
        A(f"v_lshlrev_b32 v{vT[4]}, 9, v{vT[0]}")
        A(f"v_and_b32 v{vT[1]}, 15, v0")
        A(f"v_lshl_add_u32 v{vT[4]}, v{vT[1]}, 4, v{vT[4]}")
        A(f"v_bfe_u32 v{vT[1]}, v0, 4, 1")
        A(f"v_lshl_add_u32 v{vT[4]}, v{vT[1]}, 3, v{vT[4]}")
        A(f"v_lshl_add_u32 v{vT[3]}, v{self.vB}, 9, v{self.vG4}")
        A(f"s_lshl_b32 s87, s{self.sKvO}, 13")
        A(f"s_add_u32 s87, s87, {AP_OFF + 512*half}")
        A("s_add_u32 s88, s87, 4096")
        A(f"s_lshl_b32 s89, s{self.sKvO}, 7")
        A(f"s_add_u32 s89, s89, {APH_OFF + 8*half}")

    def wo_tail(self, lact):
        A = self.A
        vT, G, C = self.vT, self.U, self.C

        def issue_o():
            for i in range(8):
                A(f"buffer_load_dwordx2 v[{G+32+2*i}:{G+33+2*i}], v{vT[6]}, s[40:43], s89 offen offset:{16*i} sc1")
            for i in range(8):
                A(f"buffer_load_dwordx4 v[{G+4*i}:{G+4*i+3}], v{vT[5]}, s[40:43], s{87+i//4} offen offset:{(i%4)*1024} sc1")
        self.poll(issue_o, range(G, G + 48), vT[0], self.sTm, sleep=1)
        self.stamp(8, vT[0])
        M, Lr, Oc = C, C + 1, C + 4
        self.combine(8, lambda w: G + 4 * w, lambda w: G + 32 + 2 * w, M, Lr, Oc)
        A(f"v_rcp_f32 v{vT[0]}, v{Lr}")
        for e in range(4):
            A(f"v_mul_f32 v{vT[1]}, v{Oc+e}, v{vT[0]}")
            A(f"v_fma_f32 v{vT[2]}, -v{vT[1]}, v{Lr}, v{Oc+e}")
            A(f"v_fma_f32 v{Oc+e}, v{vT[2]}, v{vT[0]}, v{vT[1]}")
        A(f"v_cvt_pk_bf16_f32 v{C+2}, v{Oc}, v{Oc+1}")
        A(f"v_cvt_pk_bf16_f32 v{C+3}, v{Oc+2}, v{Oc+3}")
        A(f"ds_write_b64 v{vT[4]}, v[{C+2}:{C+3}] offset:{lact}")
        self.gemv(16, vT[3], lact)
        self.gemv_fold(self.De)
        self.publish(self.De, self.sSlotO)
        self.stamp(9, vT[0])

    def combine(self, n, oreg, hreg, M, Lr, Oc):
        A = self.A
        ms = [hreg(w) for w in range(n)]
        A(f"v_max3_f32 v{M}, v{ms[0]}, v{ms[1]}, v{ms[2]}")
        k = 3
        while k < n:
            if k + 1 < n:
                A(f"v_max3_f32 v{M}, v{M}, v{ms[k]}, v{ms[k+1]}")
                k += 2
            else:
                A(f"v_max_f32 v{M}, v{M}, v{ms[k]}")
                k += 1
        for w in range(n):
            A(f"v_sub_f32 v{ms[w]}, v{ms[w]}, v{M}")
            A(f"v_mul_f32 v{ms[w]}, s{self.sLog2e}, v{ms[w]}")
        for w in range(n):
            A(f"v_exp_f32 v{ms[w]}, v{ms[w]}")
        A(f"v_mul_f32 v{Lr}, v{ms[0]}, v{ms[0]+1}")
        for e in range(4):
            A(f"v_mul_f32 v{Oc+e}, v{ms[0]}, v{oreg(0)+e}")
        for w in range(1, n):
            A(f"v_fmac_f32 v{Lr}, v{ms[w]}, v{ms[w]+1}")
            for e in range(4):
                A(f"v_fmac_f32 v{Oc+e}, v{ms[w]}, v{oreg(w)+e}")

    def auxq(self):
        A = self.A
        vT, G, C = self.vT, self.U, self.C
        vL16, vZ = self.vL16, self.vZ
        sW, sX, sDbg, sT0, sT1, sT2, sT3, sTm = self.sW, self.sX, self.sDbg, self.sT0, self.sT1, self.sT2, self.sT3, self.sTm
        sBase, sE = self.sBase, self.sE
        De, Do = self.De, self.Do
        NCH = (8 << 20) // (self.CH * 1024)
        self.aux_vgprs = 256
        A("L_auxq:")
        A("s_setprio 3")
        if self.report:
            A("s_memrealtime s[90:91]")
        self.stamp(0, vT[0])
        self.srd(sX, 16, 2304)
        self.srd(sW, 22, 576 * 4096 * 2)
        A(f"v_mul_u32_u24 v{vT[6]}, 36, v0")
        for k in range(3):
            A(f"buffer_load_dwordx3 v[{G+4*k}:{G+4*k+2}], v{vT[6]}, s[{sX}:{sX+3}], 0 offen offset:{12*k}")
        self.consts1()
        A(f"v_lshl_add_u32 v{self.vWoff}, v{self.vRow8}, 13, v{self.vC16}")
        A(f"s_and_b32 s{sT0}, s2, 3")
        A(f"s_lshr_b32 s{sT1}, s2, 2")
        A(f"s_mul_i32 s{sBase}, s{sT0}, {144*8192}")
        A(f"s_lshl_b32 s{sT1}, s{sT1}, 7")
        A(f"s_add_u32 s{sBase}, s{sBase}, s{sT1}")
        self.tile_loads(18, 8 * 8192)
        for k in range(4):
            A(f"v_mov_b32 v{C+k}, 0")
        A(f"ds_write_b128 v{vZ}, v[{C}:{C+3}] offset:{L_FLG}")
        A(f"ds_write_b128 v{vZ}, v[{C}:{C+3}] offset:{L_FLG+16}")
        A("s_waitcnt lgkmcnt(0)")
        A("s_barrier")
        A(f"s_load_dwordx2 s[{sE}:{sE+1}], s[38:39], {EPOCH_OFF}")
        self.consts2()
        A("s_waitcnt vmcnt(18)")
        X = G + 12
        for k in range(9):
            src = G + 4 * (k // 3) + k % 3
            A(f"v_lshlrev_b32 v{X+2*k}, 16, v{src}")
            A(f"v_and_b32 v{X+2*k+1}, 0xffff0000, v{src}")
        s, s2, t, mean, meanb, den, rcp, tmp, tmp2 = range(X + 18, X + 27)
        inv576 = f32(1.0 / 576.0)
        A(f"v_add_f32 v{s}, v{X}, v{X+1}")
        A(f"v_add_f32 v{s2}, v{X+2}, v{X+3}")
        for k in range(4, 18, 2):
            A(f"v_add_f32 v{s}, v{s}, v{X+k}")
            A(f"v_add_f32 v{s2}, v{s2}, v{X+k+1}")
        A(f"v_add_f32 v{s}, v{s}, v{s2}")
        self.allreduce_half_add(s, t)
        A(f"v_mul_f32 v{mean}, {inv576}, v{s}")
        for k in range(0, 18, 2):
            A(f"v_sub_f32 v{tmp}, v{X+k}, v{mean}")
            A(f"v_sub_f32 v{tmp2}, v{X+k+1}, v{mean}")
            if k == 0:
                A(f"v_mul_f32 v{s}, v{tmp}, v{tmp}")
                A(f"v_mul_f32 v{s2}, v{tmp2}, v{tmp2}")
            else:
                A(f"v_fmac_f32 v{s}, v{tmp}, v{tmp}")
                A(f"v_fmac_f32 v{s2}, v{tmp2}, v{tmp2}")
        A(f"v_add_f32 v{s}, v{s}, v{s2}")
        self.allreduce_half_add(s, t)
        A(f"v_mul_f32 v{den}, {inv576}, v{s}")
        self.bf16r(den, den)
        A(f"v_add_f32 v{den}, {f32(1e-5)}, v{den}")
        self.bf16r(den, den)
        A(f"v_sqrt_f32 v{den}, v{den}")
        self.bf16r(meanb, mean)
        self.bf16r(den, den)
        A(f"v_rcp_f32 v{rcp}, v{den}")
        for k in range(0, 18, 2):
            a, c = X + k, X + k + 1
            A(f"v_sub_f32 v{a}, v{a}, v{meanb}")
            A(f"v_sub_f32 v{c}, v{c}, v{meanb}")
            A(f"v_cvt_pk_bf16_f32 v{tmp}, v{a}, v{c}")
            A(f"v_lshlrev_b32 v{a}, 16, v{tmp}")
            A(f"v_and_b32 v{c}, 0xffff0000, v{tmp}")
            A(f"v_mul_f32 v{s}, v{a}, v{rcp}")
            A(f"v_mul_f32 v{s2}, v{c}, v{rcp}")
            A(f"v_fma_f32 v{t}, -v{s}, v{den}, v{a}")
            A(f"v_fma_f32 v{tmp2}, -v{s2}, v{den}, v{c}")
            A(f"v_fma_f32 v{a}, v{t}, v{rcp}, v{s}")
            A(f"v_fma_f32 v{c}, v{tmp2}, v{rcp}, v{s2}")
            A(f"v_cvt_pk_bf16_f32 v{G+k//2}, v{a}, v{c}")
            A(f"ds_write_b32 v{vT[6]}, v{G+k//2} offset:{L_ACTX+2*k}")
        self.set_lds(L_XN, vT[0], vZ)
        A(f"s_and_b32 s{sT0}, s2, 3")
        A(f"s_mul_i32 s{sT0}, s{sT0}, {18*16}")
        A(f"v_mul_u32_u24 v{vT[6]}, 1152, v{self.vB}")
        A(f"v_add3_u32 v{vT[6]}, v{vT[6]}, v{self.vG4}, s{sT0}")
        A(f"s_lshl_b32 s{self.sSlotQ}, s2, 10")
        A(f"s_add_u32 s{self.sSlotQ}, s{self.sSlotQ}, {QP_OFF}")
        A(f"s_add_u32 s{sE}, s{sE}, 1")
        A(f"s_add_u32 s{sE+1}, s{sE+1}, 0x9e3779b9")
        A("s_waitcnt vmcnt(0)")
        self.stamp(1, vT[0])
        self.gemv(18, vT[6], L_ACTX)
        self.gemv_fold(De)
        A(f"v_mov_b32 v{Do}, v{De+2}")
        A(f"v_mov_b32 v{Do+1}, v{De+3}")
        for d in (De, Do):
            A(f"v_mov_b32 v{d+2}, s{sE}")
            A(f"v_mov_b32 v{d+3}, s{sE+1}")
        A(f"v_lshlrev_b32 v{vT[0]}, 1, v{self.vOut}")
        A(f"s_mov_b64 exec, s[{self.sM32}:{self.sM32+1}]")
        A(f"buffer_store_dwordx4 v[{De}:{De+3}], v{vT[0]}, s[40:43], s{self.sSlotQ} offen sc1")
        A(f"buffer_store_dwordx4 v[{Do}:{Do+3}], v{vT[0]}, s[40:43], s{self.sSlotQ} offen offset:16 sc1")
        A("s_mov_b64 exec, -1")
        self.stamp(2, vT[1])
        A(f"s_lshr_b32 s{sT0}, s2, 3")
        A(f"s_lshr_b32 s{sT1}, s{sT0}, 4")
        A(f"s_and_b32 s{sT0}, s{sT0}, 15")
        A(f"s_lshl_b32 s{sT0}, s{sT0}, 14")
        A(f"s_lshl_b32 s{sT1}, s{sT1}, 9")
        A(f"s_add_u32 s{sT0}, s{sT0}, s{sT1}")
        A(f"s_add_u32 s{sT0}, s{sT0}, {QP_OFF}")
        A(f"v_lshrrev_b32 v{vT[0]}, 4, v0")
        A(f"v_lshlrev_b32 v{vT[0]}, 12, v{vT[0]}")
        A(f"v_and_b32 v{vT[1]}, 15, v0")
        A(f"v_lshl_add_u32 v{vT[5]}, v{vT[1]}, 5, v{vT[0]}")
        A(f"v_lshlrev_b32 v{vT[4]}, 3, v0")
        Q = self.P
        top, done = self.label("qp"), self.label("qpd")
        A(f"s_mov_b32 s{sTm}, {self.timeout}")
        A(f"{top}:")
        for k in range(8):
            A(f"buffer_load_dwordx4 v[{Q+4*k}:{Q+4*k+3}], v{vT[5]}, s[40:43], s{sT0} offen offset:{1024*(k//2)+16*(k%2)} sc1")
        A(f"v_mov_b32 v{vT[0]}, 0")
        for k in range(8):
            A(f"s_waitcnt vmcnt({7-k})")
            A(f"v_xor_b32 v{vT[1]}, s{sE}, v{Q+4*k+2}")
            A(f"v_xor_b32 v{vT[2]}, s{sE+1}, v{Q+4*k+3}")
            A(f"v_or3_b32 v{vT[0]}, v{vT[0]}, v{vT[1]}, v{vT[2]}")
        A(f"v_cmp_ne_u32 vcc, 0, v{vT[0]}")
        A(f"s_cbranch_vccz {done}")
        self.spin_tail(top, sTm, 1)
        A(f"{done}:")

        def qv(rr, e):
            return Q + 8 * rr + 4 * (e // 2) + (e % 2)
        for e in range(4):
            A(f"v_add_f32 v{qv(0,e)}, v{qv(0,e)}, v{qv(1,e)}")
            A(f"v_add_f32 v{qv(2,e)}, v{qv(2,e)}, v{qv(3,e)}")
        for e in range(4):
            A(f"v_add_f32 v{qv(0,e)}, v{qv(0,e)}, v{qv(2,e)}")
        A(f"v_cvt_pk_bf16_f32 v{C}, v{qv(0,0)}, v{qv(0,1)}")
        A(f"v_cvt_pk_bf16_f32 v{C+1}, v{qv(0,2)}, v{qv(0,3)}")
        A(f"ds_write_b64 v{vT[4]}, v[{C}:{C+1}] offset:{L_QL}")
        self.set_lds(L_QRDY, vT[0], vZ)
        self.stamp(4, vT[0])
        self.roles(1)
        skip = self.label("nowo")
        A(f"s_cmp_eq_u32 s{self.sHasO}, 0")
        A(f"s_cbranch_scc1 {skip}")
        self.wo_loads(1)
        self.wo_prep(1)
        A(f"{skip}:")
        self.wait_lds(L_GO, 1, vT[0], vZ, sTm, sleep=8)
        self.stamp(3, vT[0])
        sTq, sCnt, sExh = self.sTq, self.sCnt, self.sExh
        sVic, sPool, sPid = 63, 64, 65
        NROW = NCH // 32
        A(f"s_mov_b32 s{sTq}, 0")
        A(f"s_mov_b32 s{sExh}, 0")
        A(f"s_mov_b32 s{sPool}, 0")
        A(f"s_mov_b32 s{sVic}, s{self.sI}")
        A(f"s_lshl_b32 s{sCnt}, s{self.sGrp}, 11")
        A(f"s_add_u32 s{sCnt}, s{sCnt}, {CNT_OFF}")
        A(f"s_lshl_b32 s{sT2}, s2, 10")
        A(f"s_add_u32 s{sT2}, s{sT2}, {AP_OFF}")
        A(f"s_lshl_b32 s{sT3}, s2, 4")
        A(f"s_add_u32 s{sT3}, s{sT3}, {APH_OFF}")
        A(f"v_lshrrev_b32 v{vT[1]}, 5, v0")
        A(f"v_lshlrev_b32 v{C+7}, 3, v{vT[1]}")
        A(f"v_lshlrev_b32 v{C+6}, 8, v0")
        A(f"s_mov_b32 s{sTm}, {self.timeout*8}")
        LIM = NROW - self.NS
        A("L_srv:")
        A(f"ds_read_b32 v{vT[0]}, v{vZ} offset:{L_DONE}")
        A(f"ds_read_b32 v{vT[1]}, v{vZ} offset:{L_H}")
        A(f"ds_read_b32 v{vT[2]}, v{vZ} offset:{L_ANN}")
        A("s_waitcnt lgkmcnt(0)")
        A(f"v_readfirstlane_b32 s{sT0}, v{vT[0]}")
        A(f"v_readfirstlane_b32 s{sT1}, v{vT[1]}")
        A(f"v_readfirstlane_b32 s{sPool}, v{vT[2]}")
        A(f"s_cmp_eq_u32 s{sT0}, 4")
        A("s_cbranch_scc1 L_srv_done")
        A(f"s_cmp_eq_u32 s{sPool}, 0")
        A("s_cbranch_scc1 L_srv_idle")
        A(f"s_sub_u32 s{sT1}, s{sTq}, s{sT1}")
        A(f"s_cmp_ge_i32 s{sT1}, {self.low}")
        A("s_cbranch_scc1 L_srv_idle")
        A(f"s_mov_b32 s{sPid}, {NCH}")
        A(f"s_cmp_lg_u32 s{sExh}, 0")
        A("s_cbranch_scc1 L_srv_put")
        A(f"s_lshl_b32 s{sT0}, s{sVic}, 8")
        A(f"s_add_u32 s{sT0}, s{sT0}, s{sCnt}")
        A(f"v_mov_b32 v{vT[2]}, 1")
        A("s_mov_b64 exec, 1")
        A(f"buffer_atomic_add v{vT[2]}, v{vZ}, s[40:43], s{sT0} offen sc0")
        A("s_mov_b64 exec, 0xff")
        A(f"buffer_load_dword v{vT[1]}, v{C+6}, s[40:43], s{sCnt} offen sc1")
        A("s_waitcnt vmcnt(0)")
        A(f"v_readfirstlane_b32 s{sT0}, v{vT[2]}")
        A(f"s_add_u32 s{sT0}, s{sT0}, 1")
        A(f"s_add_u32 s{sPid}, s{sT0}, {self.NS}")
        A(f"s_lshl_b32 s{sPid}, s{sPid}, 5")
        A(f"s_lshl_b32 s{sT1}, s{sVic}, 2")
        A(f"s_add_u32 s{sPid}, s{sPid}, s{sT1}")
        A(f"s_cmp_lt_u32 s{sT0}, {LIM-1}")
        A("s_cbranch_scc1 L_srv_keep")
        A(f"v_add_u32 v{vT[1]}, 1, v{vT[1]}")
        A(f"v_mov_b32 v{vT[2]}, {LIM}")
        A(f"v_cmp_eq_u32 vcc, s{sVic}, v0")
        A(f"v_cndmask_b32 v{vT[1]}, v{vT[1]}, v{vT[2]}, vcc")
        A(f"v_min_u32 v{vT[1]}, v{vT[1]}, v{vT[2]}")
        A(f"v_lshl_add_u32 v{vT[1]}, v{vT[1]}, 3, v0")
        A(f"v_min_u32_dpp v{vT[1]}, v{vT[1]}, v{vT[1]} quad_perm:[1,0,3,2] {DM}")
        A(f"v_min_u32_dpp v{vT[1]}, v{vT[1]}, v{vT[1]} quad_perm:[2,3,0,1] {DM}")
        A(f"v_min_u32_dpp v{vT[1]}, v{vT[1]}, v{vT[1]} row_half_mirror {DM}")
        A(f"v_readfirstlane_b32 s{sT1}, v{vT[1]}")
        A(f"s_and_b32 s{sVic}, s{sT1}, 7")
        A(f"s_lshr_b32 s{sT1}, s{sT1}, 3")
        A(f"s_cmp_ge_u32 s{sT1}, {LIM}")
        A(f"s_cselect_b32 s{sExh}, 1, 0")
        A("L_srv_keep:")
        A("s_mov_b64 exec, -1")
        A(f"s_cmp_lt_u32 s{sT0}, {LIM}")
        A("s_cbranch_scc0 L_srv")
        A("L_srv_put:")
        A(f"v_add_u32 v{vT[2]}, s{sTq}, v0")
        A(f"v_and_b32 v{vT[2]}, 15, v{vT[2]}")
        A(f"v_lshlrev_b32 v{vT[2]}, 2, v{vT[2]}")
        A(f"v_add_u32 v{vT[0]}, s{sPid}, v0")
        A(f"s_add_u32 s{sTq}, s{sTq}, 4")
        A(f"v_mov_b32 v{vT[1]}, s{sTq}")
        A("s_mov_b64 exec, 0xf")
        A(f"ds_write_b32 v{vT[2]}, v{vT[0]} offset:{L_Q}")
        A(f"ds_write_b32 v{vZ}, v{vT[1]} offset:{L_T}")
        A("s_mov_b64 exec, -1")
        A("s_branch L_srv")
        A("L_srv_idle:")
        self.spin_tail("L_srv", sTm, self.srv_sleep)
        A("L_srv_done:")
        if self.report:
            A("s_memrealtime s[92:93]")
        self.stamp(6, vT[0])
        for w in range(4):
            A(f"ds_read_b64 v[{G+16+2*w}:{G+17+2*w}], v{C+7} offset:{L_WH+16*w}")
        for w in range(4):
            A(f"ds_read_b128 v[{G+4*w}:{G+4*w+3}], v{vL16} offset:{L_WP+1024*w}")
        A("s_waitcnt lgkmcnt(0)")
        M, Lr, Oc = G + 24, G + 25, G + 28
        self.combine(4, lambda w: G + 4 * w, lambda w: G + 16 + 2 * w, M, Lr, Oc)
        self.sanitize([Oc, Oc + 1, Oc + 2, Oc + 3, M, Lr])
        A(f"buffer_store_dwordx4 v[{Oc}:{Oc+3}], v{vL16}, s[40:43], s{sT2} offen sc1")
        A("s_mov_b32 exec_lo, 1")
        A("s_mov_b32 exec_hi, 1")
        A(f"buffer_store_dwordx2 v[{M}:{Lr}], v{C+7}, s[40:43], s{sT3} offen sc1")
        A("s_mov_b64 exec, -1")
        self.stamp(7, vT[0])
        A(f"s_cmp_eq_u32 s{self.sHasO}, 0")
        A("s_cbranch_scc1 L_q_nowo")
        self.wo_tail(L_ACTQ)
        A("s_endpgm")
        A("L_q_nowo:")
        A(f"s_cmp_eq_u32 s{self.sFinal}, 0")
        A("s_cbranch_scc1 L_end")
        FA = self.Wb
        FB = G
        self.srd(sX, 34, 2304)
        for k in range(1, 4):
            A(f"s_add_u32 s{sT0+k}, s{self.sFin}, {4096*k}")
        A(f"s_mov_b32 s{sT0}, s{self.sFin}")
        A(f"v_bfe_u32 v{vT[1]}, v0, 4, 1")
        A(f"v_mul_u32_u24 v{vT[1]}, 1152, v{vT[1]}")
        A(f"v_and_b32 v{vT[2]}, 15, v0")
        A(f"v_lshl_add_u32 v{vT[3]}, v{vT[2]}, 3, v{vT[1]}")
        A(f"v_and_b32 v{vT[2]}, 31, v0")
        A(f"v_lshlrev_b32 v{vT[2]}, 5, v{vT[2]}")
        self.wait_lds(L_FIN, 1, vT[0], vZ, sTm, sleep=1)
        A(f"ds_read_b128 v[{FB}:{FB+3}], v{vT[2]} offset:{L_ACTF}")
        A(f"ds_read_b128 v[{FB+4}:{FB+7}], v{vT[2]} offset:{L_ACTF+16}")

        def issue_fin():
            for k in range(16):
                A(f"buffer_load_dwordx4 v[{FA+4*k}:{FA+4*k+3}], v{vL16}, s[40:43], s{sT0+k//4} offen offset:{(k%4)*1024} sc1")
        self.poll(issue_fin, range(FA, FA + 64), vT[0], sTm, sleep=1)
        st = 1
        while st < 16:
            for k in range(0, 16, 2 * st):
                for e in range(4):
                    A(f"v_add_f32 v{FA+4*k+e}, v{FA+4*k+e}, v{FA+4*(k+st)+e}")
            st *= 2
        for e in range(4):
            A(f"v_mov_b32 v{FA+4+e}, v{FA+e}")
        for e in range(4):
            A(f"v_permlane32_swap_b32 v{FA+4+e}, v{FA+e}")
        for e in range(4):
            A(f"v_add_f32 v{FA+e}, v{FA+e}, v{FA+4+e}")
        A("s_waitcnt lgkmcnt(0)")
        for e in range(4):
            self.bf16r(FA + e, FA + e)
            A(f"v_add_f32 v{FA+e}, v{FB+4+e}, v{FA+e}")
            self.bf16r(FA + e, FA + e)
            A(f"v_add_f32 v{FA+e}, v{FA+e}, v{FB+e}")
        A(f"v_cvt_pk_bf16_f32 v{FA+4}, v{FA}, v{FA+1}")
        A(f"v_cvt_pk_bf16_f32 v{FA+5}, v{FA+2}, v{FA+3}")
        A("s_mov_b32 exec_hi, 0")
        A(f"buffer_store_dwordx2 v[{FA+4}:{FA+5}], v{vT[3]}, s[{sX}:{sX+3}], s{self.sFinX} offen")
        A("s_mov_b64 exec, -1")
        self.stamp(10, vT[0])
        A("s_cmp_lg_u32 s2, 7")
        A("s_cbranch_scc1 L_end")
        if self.report:
            self.srd(sDbg, 36, 256)
            A("s_memrealtime s[94:95]")
            A("s_waitcnt lgkmcnt(0)")
            A("s_sub_u32 s94, s94, s90")
            A("s_sub_u32 s92, s92, s90")
            A(f"v_mov_b32 v{vT[1]}, s94")
            A(f"v_mov_b32 v{vT[2]}, s92")
            A("s_mov_b64 exec, 1")
            A(f"buffer_store_dwordx2 v[{vT[1]}:{vT[2]}], v{vZ}, s[{sDbg}:{sDbg+3}], 0 offen offset:8")
            A("s_mov_b64 exec, -1")
        A(f"v_mov_b32 v{vT[3]}, s{sE}")
        A(f"v_mov_b32 v{vT[4]}, s{sE+1}")
        A(f"s_mov_b32 s{sT0}, {EPOCH_OFF}")
        A("s_mov_b64 exec, 1")
        A(f"buffer_store_dwordx2 v[{vT[3]}:{vT[4]}], v{vZ}, s[40:43], s{sT0} offen")
        A("s_endpgm")

    def gu_setup(self):
        A = self.A
        sW, sT0, sT1, sBase, sU = self.sW, self.sT0, self.sT1, self.sBase, self.sU
        A(f"s_cmp_lt_u32 s{sU}, 144")
        A(f"s_cselect_b32 s{sW}, s28, s30")
        A(f"s_cselect_b32 s{sW+1}, s29, s31")
        A(f"s_cselect_b32 s{sT0}, 0, 144")
        A(f"s_and_b32 s{sW+1}, s{sW+1}, 0xffff")
        A(f"s_mov_b32 s{sW+2}, {576*4608*2}")
        A(f"s_mov_b32 s{sW+3}, 0x20000")
        A(f"s_sub_u32 s{sT0}, s{sU}, s{sT0}")
        A(f"s_and_b32 s{sT1}, s{sT0}, 1")
        A(f"s_lshr_b32 s{sT0}, s{sT0}, 1")
        A(f"s_lshl_b32 s{sBase}, s{sT0}, 7")
        A(f"s_mul_i32 s{sT0}, s{sT1}, {288*9216}")
        A(f"s_add_u32 s{sBase}, s{sBase}, s{sT0}")
        A(f"s_mul_i32 s{self.sT3}, s{sT1}, {36*16}")

    def auxf(self):
        A = self.A
        vT, G, C = self.vT, self.U, self.C
        vL16, vZ, vWoff = self.vL16, self.vZ, self.vWoff
        sW, sX, sDbg, sT0, sT1, sT2, sT3, sTm = self.sW, self.sX, self.sDbg, self.sT0, self.sT1, self.sT2, self.sT3, self.sTm
        sBase, sU = self.sBase, self.sU
        De = self.De
        A("L_auxf:")
        A("s_setprio 2")
        self.stamp(0, vT[0])
        lab = self.label("noclr")
        A(f"s_cmp_ge_u32 s2, {CLR_AGENTS}")
        A(f"s_cbranch_scc1 {lab}")
        A(f"v_lshlrev_b32 v{vL16}, 4, v0")
        for k in range(4):
            A(f"v_mov_b32 v{De+k}, -1")
        A(f"s_mul_i32 s{sT0}, s2, {CLR_KIB*1024}")
        for k in range(CLR_KIB):
            if k and k % 4 == 0:
                A(f"s_add_u32 s{sT0}, s{sT0}, 4096")
            A(f"buffer_store_dwordx4 v[{De}:{De+3}], v{vL16}, s[40:43], s{sT0} offen offset:{(k%4)*1024} sc1")
        A(f"{lab}:")
        A("s_barrier")
        self.consts1()
        self.srd(sDbg, 36, 256)
        lab = self.label("noagent")
        A(f"s_cmp_ge_u32 s2, {CLR_AGENTS}")
        A(f"s_cbranch_scc1 {lab}")
        A(f"v_mov_b32 v{vT[0]}, 1")
        A("s_waitcnt vmcnt(0)")
        A("s_mov_b64 exec, 1")
        A(f"buffer_atomic_add v{vT[0]}, v{vZ}, s[{sDbg}:{sDbg+3}], 0 offen sc0")
        A("s_waitcnt vmcnt(0)")
        A(f"v_cmp_eq_u32 vcc, {CLR_AGENTS-1}, v{vT[0]}")
        A("s_mov_b64 exec, -1")
        A(f"s_cbranch_vccz {lab}")
        A(f"v_mov_b32 v{vT[0]}, 1")
        A("s_mov_b64 exec, 1")
        A(f"buffer_store_dword v{vT[0]}, v{vZ}, s[{sDbg}:{sDbg+3}], 0 offen offset:128 sc1")
        A("s_mov_b64 exec, -1")
        A(f"{lab}:")
        self.stamp(1, vT[0])
        A(f"s_lshr_b32 s{sT0}, s2, 3")
        A(f"s_and_b32 s{sT1}, s2, 7")
        A(f"s_mul_i32 s{sU}, s{sT0}, 9")
        A(f"s_add_u32 s{sU}, s{sU}, s{sT1}")
        A(f"v_mul_u32_u24 v{vWoff}, 9216, v{self.vRow8}")
        A(f"v_add_u32 v{vWoff}, v{vWoff}, v{self.vC16}")
        self.gu_setup()
        if not self.early_gu:
            self.wait_lds(L_QRDY, 1, vT[0], vZ, sTm, sleep=4)
        self.tile_loads(36, 8 * 9216)
        self.consts2()
        self.roles(0)
        A(f"v_mul_u32_u24 v{vT[5]}, 1152, v{self.vB}")
        A(f"v_add_u32 v{vT[5]}, v{vT[5]}, v{self.vG4}")
        A(f"v_add_u32 v{vT[6]}, s{sT3}, v{vT[5]}")
        self.wait_lds(L_XN, 1, vT[0], vZ, sTm, sleep=2)
        A("s_waitcnt vmcnt(0)")
        self.gemv(36, vT[6], L_ACTX)
        self.gemv_fold(C)
        A(f"s_cmp_lg_u32 s{self.sI}, 0")
        A("s_cbranch_scc1 L_gu_done")
        A(f"s_add_u32 s{sU}, s{sU}, 8")
        self.gu_setup()
        self.tile_loads(36, 8 * 9216)
        A(f"v_add_u32 v{vT[6]}, s{sT3}, v{vT[5]}")
        A(f"s_sub_u32 s{sU}, s{sU}, 8")
        A("s_waitcnt vmcnt(0)")
        self.gemv(36, vT[6], L_ACTX)
        self.gemv_fold(C + 4)
        A("L_gu_done:")
        self.stamp(3, vT[0])
        A(f"v_mul_u32_u24 v{vWoff}, 1152, v{self.vRow8}")
        A(f"v_add_u32 v{vWoff}, v{vWoff}, v{self.vC16}")
        skip = self.label("nodl")
        A(f"s_cmp_eq_u32 s{self.sHasD}, 0")
        A(f"s_cbranch_scc1 {skip}")
        self.srd(sW, 32, 4608 * 576 * 2)
        A(f"s_mul_i32 s{sBase}, s{self.sRbD}, {256*1152}")
        A(f"s_lshl_b32 s{sT0}, s{self.sCbD}, 7")
        A(f"s_add_u32 s{sBase}, s{sBase}, s{sT0}")
        self.tile_loads(32, 8 * 1152)
        A(f"{skip}:")
        top, done = self.label("hs"), self.label("hsd")
        A("s_mov_b64 exec, 1")
        A(f"s_mov_b32 s{sTm}, {self.timeout}")
        A(f"{top}:")
        A(f"buffer_load_dword v{vT[0]}, v{vZ}, s[{sDbg}:{sDbg+3}], 0 offen offset:128 sc1")
        A("s_waitcnt vmcnt(0)")
        A(f"v_cmp_ne_u32 vcc, 1, v{vT[0]}")
        A(f"s_cbranch_vccz {done}")
        self.spin_tail(top, sTm, 4)
        A(f"{done}:")
        self.set_lds(L_GO, vT[0], vZ)
        A("s_mov_b64 exec, -1")
        A(f"s_lshl_b32 s{sT0}, s{sU}, 9")
        A(f"s_add_u32 s{sT0}, s{sT0}, {GU_OFF}")
        self.publish(C, sT0)
        lab = self.label("gu2")
        A(f"s_cmp_lg_u32 s{self.sI}, 0")
        A(f"s_cbranch_scc1 {lab}")
        A(f"s_add_u32 s{sT0}, s{sT0}, {8*512}")
        self.publish(C + 4, sT0)
        A(f"{lab}:")
        self.stamp(2, vT[0])
        skip = self.label("nodown")
        A(f"s_cmp_eq_u32 s{self.sHasD}, 0")
        A(f"s_cbranch_scc1 {skip}")
        A(f"v_lshrrev_b32 v{vT[0]}, 4, v0")
        A(f"v_lshlrev_b32 v{vT[0]}, 10, v{vT[0]}")
        A(f"v_and_b32 v{vT[1]}, 15, v0")
        A(f"v_lshl_add_u32 v{vT[5]}, v{vT[1]}, 4, v{vT[0]}")
        A(f"s_lshl_b32 s{sT0}, s{self.sRbD}, 12")
        A(f"s_add_u32 s{sT0}, s{sT0}, {GU_OFF}")
        A(f"s_add_u32 s{sT1}, s{sT0}, {144*512}")

        def issue_gu():
            for hf in range(2):
                for b in range(2):
                    o = G + 16 * hf + 8 * b
                    A(f"buffer_load_dwordx4 v[{o}:{o+3}], v{vT[5]}, s[40:43], s{sT0} offen offset:{512*hf+256*b} sc1")
                    A(f"buffer_load_dwordx4 v[{o+4}:{o+7}], v{vT[5]}, s[40:43], s{sT1} offen offset:{512*hf+256*b} sc1")
        self.poll(issue_gu, range(G, G + 32), vT[0], sTm, sleep=8)
        for k in range(16):
            A(f"v_add_f32 v{G+k}, v{G+k}, v{G+16+k}")
        A(f"s_mov_b32 s{sT2}, {f32(0.044715)}")
        A(f"s_mov_b32 s{sT3}, {f32(-2.0 * 0.7978845608028654 * LOG2E)}")
        for b in range(2):
            for k in range(4):
                g, u = G + 8 * b + k, G + 8 * b + 4 + k
                t0, t1 = vT[0], vT[1]
                A(f"v_cvt_pk_bf16_f32 v{t0}, v{g}, v{u}")
                A(f"v_lshlrev_b32 v{g}, 16, v{t0}")
                A(f"v_and_b32 v{u}, 0xffff0000, v{t0}")
                A(f"v_mul_f32 v{t0}, v{g}, v{g}")
                A(f"v_mul_f32 v{t0}, v{t0}, v{g}")
                A(f"v_fma_f32 v{t0}, v{t0}, s{sT2}, v{g}")
                A(f"v_mul_f32 v{t0}, s{sT3}, v{t0}")
                A(f"v_exp_f32 v{t0}, v{t0}")
                A(f"v_add_f32 v{t0}, 1.0, v{t0}")
                A(f"v_rcp_f32 v{t1}, v{t0}")
                A(f"v_mul_f32 v{g}, v{g}, v{t1}")
                self.bf16r(g, g)
                A(f"v_mul_f32 v{g}, v{g}, v{u}")
            A(f"v_cvt_pk_bf16_f32 v{C+2*b}, v{G+8*b}, v{G+8*b+1}")
            A(f"v_cvt_pk_bf16_f32 v{C+2*b+1}, v{G+8*b+2}, v{G+8*b+3}")
        A(f"v_lshlrev_b32 v{vT[0]}, 3, v0")
        A(f"ds_write_b64 v{vT[0]}, v[{C}:{C+1}] offset:{L_ACTF}")
        A(f"ds_write_b64 v{vT[0]}, v[{C+2}:{C+3}] offset:{L_ACTF+512}")
        A(f"v_lshl_add_u32 v{vT[3]}, v{self.vB}, 9, v{self.vG4}")
        self.gemv(32, vT[3], L_ACTF)
        self.gemv_fold(De)
        self.publish(De, self.sSlotD)
        A(f"{skip}:")
        self.stamp(5, vT[0])
        A(f"s_cmp_eq_u32 s{self.sHasO}, 0")
        A("s_cbranch_scc1 L_f_nowo")
        self.wo_loads(0)
        self.wo_prep(0)
        self.wait_lds(L_DONE, 4, vT[0], vZ, sTm, sleep=1)
        self.stamp(6, vT[0])
        self.wo_tail(L_ACTF)
        A("s_endpgm")
        A("L_f_nowo:")
        A(f"s_cmp_eq_u32 s{self.sFinal}, 0")
        A("s_cbranch_scc1 L_end")
        FB = self.Wb
        self.srd(sX, 16, 2304)
        for k in range(3):
            A(f"s_add_u32 s{sT0+k}, s{self.sFin}, {32*512+4096*k}")

        def issue_ffn():
            for k in range(9):
                A(f"buffer_load_dwordx4 v[{FB+4*k}:{FB+4*k+3}], v{vL16}, s[40:43], s{sT0+k//4} offen offset:{(k%4)*1024} sc1")
        self.poll(issue_ffn, range(FB, FB + 36), vT[0], sTm, sleep=32)
        for k in range(1, 9):
            for e in range(4):
                A(f"v_add_f32 v{FB+e}, v{FB+e}, v{FB+4*k+e}")
        for e in range(4):
            A(f"v_mov_b32 v{vT[0]}, v{FB+e}")
            A(f"v_permlane32_swap_b32 v{vT[0]}, v{FB+e}")
            A(f"v_add_f32 v{FB+e}, v{FB+e}, v{vT[0]}")
            self.bf16r(FB + e, FB + e)
        A(f"v_bfe_u32 v{vT[0]}, v0, 4, 1")
        A(f"v_mul_u32_u24 v{vT[0]}, 1152, v{vT[0]}")
        A(f"v_and_b32 v{vT[1]}, 15, v0")
        A(f"v_lshl_add_u32 v{FB+8}, v{vT[1]}, 3, v{vT[0]}")
        A(f"buffer_load_dwordx2 v[{FB+10}:{FB+11}], v{FB+8}, s[{sX}:{sX+3}], s{self.sFinX} offen")
        A("s_waitcnt vmcnt(0)")
        A(f"v_lshlrev_b32 v{FB+4}, 16, v{FB+10}")
        A(f"v_and_b32 v{FB+5}, 0xffff0000, v{FB+10}")
        A(f"v_lshlrev_b32 v{FB+6}, 16, v{FB+11}")
        A(f"v_and_b32 v{FB+7}, 0xffff0000, v{FB+11}")
        A(f"v_lshlrev_b32 v{vT[2]}, 5, v0")
        A("s_mov_b32 exec_hi, 0")
        A(f"ds_write_b128 v{vT[2]}, v[{FB}:{FB+3}] offset:{L_ACTF}")
        A(f"ds_write_b128 v{vT[2]}, v[{FB+4}:{FB+7}] offset:{L_ACTF+16}")
        self.set_lds(L_FIN, vT[0], vZ)
        A("s_mov_b64 exec, -1")
        self.stamp(7, vT[0])
        A("L_end:")
        A("s_endpgm")

    def footer(self):
        nv = max(self.stream_vgprs, self.aux_vgprs)
        self.A(f""".section .rodata,"a"
.p2align 6
.amdhsa_kernel {KNAME}
  .amdhsa_next_free_vgpr {nv}
  .amdhsa_next_free_sgpr 102
  .amdhsa_accum_offset {(nv+3)//4*4}
  .amdhsa_group_segment_fixed_size 0
  .amdhsa_kernarg_size 96
  .amdhsa_user_sgpr_count 2
  .amdhsa_user_sgpr_kernarg_segment_ptr 1
  .amdhsa_system_sgpr_workgroup_id_x 1
  .amdhsa_float_denorm_mode_32 3
.end_amdhsa_kernel""")

    def build(self):
        self.header()
        self.stream()
        self.auxq()
        self.auxf()
        self.footer()
        out, nops = hazard.run(self.L)
        return "\n".join(out) + "\n"


def gen(**kw):
    return Gen(**kw).build()


if __name__ == "__main__":
    kw = eval("dict(%s)" % (sys.argv[2] if len(sys.argv) > 2 else ""))
    open(sys.argv[1], "w").write(gen(**kw))
```
